```python
import torch

def _softmax(x, axis=-1):
    return torch.softmax(x, dim=axis)

def _gelu(x):
    return torch.nn.functional.gelu(x, approximate='tanh')

def _silu(x):
    return torch.nn.functional.silu(x)

def _sigmoid(x):
    return torch.sigmoid(x)

def _layernorm(x, axis=-1, eps=1e-05):
    m = x.mean(dim=axis, keepdim=True)
    v = x.var(dim=axis, keepdim=True, unbiased=False)
    return (x - m) / torch.sqrt(v + eps)

def _scatter_add(tgt, idx, src, axis=0):
    return tgt.clone().index_add_(axis, idx, src)

def _segment_sum(src, seg, n):
    out = torch.zeros((n,) + src.shape[1:], dtype=src.dtype)
    return out.index_add_(0, seg, src)

def _pad(x, pw):
    flat = tuple((v for pair in reversed(pw) for v in pair))
    return torch.nn.functional.pad(x, flat)
kernel_name = 'gated_mix__mha_block__mixer_gmlp__prompt'

def setup_inputs():

    _w = lambda a: (lambda t: t.to(torch.bfloat16) if t.is_floating_point() else t)(torch.as_tensor(a))

    def _A_setup():
        B, S, D, H = (1, 2048, 512, 32)
        return {'x': _w((lambda *s: torch.randn(*s, dtype=torch.bfloat16) * 0.05)(B, S, D)), 'wqkv': _w((lambda *s: torch.randn(*s, dtype=torch.bfloat16) * 1.6)(D, 3 * D)), 'wo': _w((lambda *s: torch.randn(*s, dtype=torch.bfloat16) * 0.1)(D, D))}
    _A_in = _A_setup()

    def _B_setup():
        B, S, D, F = (1, 2048, 512, 1792)
        Fh = F // 2
        return {'x': _w((lambda *s: torch.randn(*s, dtype=torch.bfloat16) * 0.05)(B, S, D)), 'w_in': _w((lambda *s: torch.randn(*s, dtype=torch.bfloat16) * 0.8)(D, 2 * Fh)), 'w_sp': _w(0.01 * (lambda *s: torch.randn(*s, dtype=torch.bfloat16) * 0.8)(S, S)), 'b_sp': _w(1.0 + 0.01 * (lambda *s: torch.randn(*s, dtype=torch.bfloat16) * 0.05)(S)), 'w_out': _w((lambda *s: torch.randn(*s, dtype=torch.bfloat16) * 0.05)(Fh, D))}
    _B_in = _B_setup()
    return {'A_x': _A_in['x'], 'A_wqkv': _A_in['wqkv'], 'A_wo': _A_in['wo'], 'B_x': _B_in['x'], 'B_w_in': _B_in['w_in'], 'B_w_sp': _B_in['w_sp'], 'B_b_sp': _B_in['b_sp'], 'B_w_out': _B_in['w_out'], 'gate_w': _w((lambda *s: torch.randn(*s, dtype=torch.bfloat16) * 0.05)(512) * 16.0)}

def reference(A_x, A_wqkv, A_wo, B_x, B_w_in, B_w_sp, B_b_sp, B_w_out, gate_w):

    def _A_ref(x, wqkv, wo):
        B, S, D = x.shape
        H = 32
        Dh = D // H
        qkv = (lambda x, *d: x.permute(*d))((x @ wqkv).reshape(B, S, 3, H, Dh), 2, 0, 3, 1, 4)
        q, k, v = (qkv[0], qkv[1], qkv[2])
        scores = torch.einsum('bhqd,bhkd->bhqk', q, k) * Dh ** (-0.5)
        p = _softmax(scores, axis=-1)
        o = torch.einsum('bhqk,bhkd->bhqd', p, v)
        return (lambda x, *d: x.permute(*d))(o, 0, 2, 1, 3).reshape(B, S, D) @ wo

    def _B_ref(x, w_in, w_sp, b_sp, w_out):
        B, S, D = x.shape
        F = w_in.shape[-1]
        Fh = F // 2
        z = _gelu(torch.einsum('bsd,df->bsf', x, w_in))
        z1 = z[..., :Fh].clone()
        z2 = _layernorm(z[..., Fh:], axis=-1)
        g = torch.einsum('ts,bsf->btf', w_sp, z2) + b_sp[None, :, None]
        return torch.einsum('bsf,fd->bsd', z1 * g, w_out)
    x = A_x
    g = _sigmoid((x * gate_w).sum(-1, keepdims=True))
    a = _A_ref(x, A_wqkv, A_wo)
    b = _B_ref(x, B_w_in, B_w_sp, B_b_sp, B_w_out)
    return g * a + (1 - g) * b
```

```python
import re

class Asm:
    def __init__(self):
        self.lines = []
        self.lds_q = []
        self.vm_q = []
        self.vm_total = 0
    def __call__(self, s):
        for ln in s.strip("\n").split("\n"):
            ln = ln.strip()
            if ln: self.lines.append("    " + ln)
    def label(self, name):
        self.lines.append(name + ":")
    def raw(self, s):
        self.lines.append(s)
    def comment(self, s):
        self.lines.append("    ; " + s)
    def ds(self, s, tag=None):
        self(s); self.lds_q.append(tag)
    def vm(self, s, tag=None):
        self(s); self.vm_q.append(tag); self.vm_total += 1
    @staticmethod
    def _need(q, tags):
        idx = -1
        for i, t in enumerate(q):
            if t in tags: idx = i
        if idx < 0: return None
        return len(q) - idx - 1
    def wait(self, lds=(), vm=(), lds_all=False, vm_all=False):
        if isinstance(lds, (str, tuple)) and not isinstance(lds, list): lds = [lds] if lds != () else []
        if isinstance(vm, (str, tuple)) and not isinstance(vm, list): vm = [vm] if vm != () else []
        parts = []
        n = (0 if self.vm_q else None) if vm_all else self._need(self.vm_q, vm)
        if n is not None:
            n = min(n, 63)
            parts.append(f"vmcnt({n})"); self.vm_q = self.vm_q[len(self.vm_q)-n:] if n else []
        n = (0 if self.lds_q else None) if lds_all else self._need(self.lds_q, lds)
        if n is not None:
            n = min(n, 15)
            parts.append(f"lgkmcnt({n})"); self.lds_q = self.lds_q[len(self.lds_q)-n:] if n else []
        if parts: self("s_waitcnt " + " ".join(parts))
    def text(self):
        return "\n".join(self.lines) + "\n"

_reg = re.compile(r"\b([vas])(\d+)\b|\b([vas])\[(\d+):(\d+)\]")
def regs_of(op):
    out = set()
    for m in _reg.finditer(op):
        if m.group(1): out.add((m.group(1), int(m.group(2))))
        else:
            for i in range(int(m.group(4)), int(m.group(5)) + 1): out.add((m.group(3), i))
    if re.search(r"\bvcc\b", op): out.add(("s", "vcc"))
    if re.search(r"\bm0\b", op): out.add(("s", "m0"))
    if re.search(r"\bexec\b", op): out.add(("s", "exec"))
    return out

TRANS = ("v_exp_f32", "v_log_f32", "v_rcp_f32", "v_rsq_f32", "v_sqrt_f32", "v_sin_f32", "v_cos_f32")
def parse(line):
    line = line.split(";")[0].strip()
    if not line or line.endswith(":") or line.startswith("."): return None
    parts = line.split(None, 1)
    mn = parts[0]
    ops = [o.strip() for o in parts[1].split(",")] if len(parts) > 1 else []
    d = dict(mn=mn, ops=ops, text=line, dst=set(), src=set())
    if mn.startswith("v_mfma"):
        d["kind"] = "mfma"; d["dst"] = regs_of(ops[0]); d["A"] = regs_of(ops[1]); d["B"] = regs_of(ops[2]); d["C"] = regs_of(ops[3])
        d["src"] = d["A"] | d["B"] | d["C"]
        d["passes"] = 8 if "32x32x16" in mn else 4
    elif mn.startswith("v_cmp"):
        d["kind"] = "valu"; d["dst"] = regs_of(ops[0]); d["src"] = set().union(*[regs_of(o) for o in ops[1:]])
    elif mn.startswith("v_permlane") and "swap" in mn:
        d["kind"] = "valu"; d["dst"] = regs_of(ops[0]) | regs_of(ops[1]); d["src"] = set(d["dst"]); d["perm"] = True
    elif mn.startswith("v_"):
        d["kind"] = "valu"; d["dst"] = regs_of(ops[0]); d["src"] = set().union(*[regs_of(o) for o in ops[1:]]) if len(ops) > 1 else set()
        if mn.startswith(("v_fmac", "v_pk_fmac")) or "UNUSED_PRESERVE" in line: d["src"] |= d["dst"]
        if mn.startswith(("v_add_co", "v_addc_co", "v_sub_co", "v_subb_co")): d["dst"] |= regs_of(ops[1])
        if "dpp" in mn or "row_" in line or "quad_perm" in line: d["dpp"] = True
    elif mn.startswith("ds_"):
        d["kind"] = "ds"
        if "read" in mn or "bpermute" in mn or "swizzle" in mn:
            d["dst"] = regs_of(ops[0]); d["src"] = set().union(*[regs_of(o) for o in ops[1:]])
        else: d["src"] = set().union(*[regs_of(o) for o in ops])
    elif mn.startswith(("buffer_", "global_")):
        d["kind"] = "vmem"
        if " lds" in line or "_lds_" in mn:
            d["src"] = set().union(*[regs_of(o) for o in ops]); d["ldsdma"] = True
        elif "load" in mn:
            d["dst"] = regs_of(ops[0]); d["src"] = set().union(*[regs_of(o) for o in ops[1:]])
        else:
            d["src"] = set().union(*[regs_of(o) for o in ops])
            if "x4" in mn or "x3" in mn:
                d["wide"] = regs_of(ops[0]) if mn.startswith("buffer_") else regs_of(ops[1])
    elif mn.startswith("s_"):
        d["kind"] = "salu"
        if mn == "s_nop": d["nop"] = int(ops[0], 0) + 1
        elif mn.startswith(("s_cmp", "s_cbranch", "s_branch", "s_waitcnt", "s_barrier", "s_endpgm", "s_setprio", "s_sleep")): pass
        else:
            if ops: d["dst"] = regs_of(ops[0])
            d["src"] = set().union(*[regs_of(o) for o in ops[1:]]) if len(ops) > 1 else set()
    else:
        d["kind"] = "other"
    return d

def check_hazards(lines, name=""):
    ins = [p for p in (parse(l) for l in lines) if p]
    errs = []
    for i, c in enumerate(ins):
        dist = 0
        for j in range(i - 1, max(-1, i - 24), -1):
            p = ins[j]
            need = 0
            k, pk = c["kind"], p["kind"]
            if pk == "mfma":
                P = p["passes"]
                raw_other = P + 4; ovl = P + 2; war_c = P - 1
                if k == "mfma":
                    if p["dst"] & (c["A"] | c["B"]): need = max(need, raw_other)
                    if p["dst"] & c["C"]:
                        if not (p["dst"] == c["C"] and P == c["passes"]): need = max(need, ovl)
                    elif p["dst"] & c["dst"] and p["dst"] != c["dst"]: need = max(need, ovl)
                elif k in ("valu", "ds", "vmem"):
                    if p["dst"] & (c["src"] | c["dst"]): need = max(need, raw_other)
                    if k == "valu" and p["C"] & c["dst"]: need = max(need, war_c)
            if pk == "valu":
                vd = {r for r in p["dst"] if r[0] in "va"}
                sd = {r for r in p["dst"] if r[0] == "s"}
                if k == "mfma" and vd & c["src"]: need = max(need, 2)
                if k == "valu" and p["mn"].replace("_e32", "").replace("_e64", "") in TRANS and vd & c["src"] and c["mn"] not in TRANS: need = max(need, 1)
                if k == "valu" and c.get("perm") and vd & c["src"]: need = max(need, 2)
                if k == "valu" and c.get("dpp") and vd & c["src"]: need = max(need, 2)
                if k == "valu" and c["mn"].startswith(("v_readlane", "v_readfirstlane")) and vd & c["src"]: need = max(need, 1)
                if k == "valu" and sd & c["src"]: need = max(need, 2)
                if k == "vmem" and sd & c["src"]: need = max(need, 5)
                if k == "valu" and ("sdwa" in p["mn"] or "op_sel" in p["text"]) and not p["mn"].startswith("v_pk") and vd & (c["src"] | c["dst"]): need = max(need, 1)
            if pk == "vmem" and p.get("wide") and k in ("valu",) and p["wide"] & c["dst"]: need = max(need, 2)
            if pk == "vmem" and p.get("wide") and k in ("ds", "vmem", "mfma") and p["wide"] & c["dst"]: need = max(need, 1)
            if pk == "salu" and ("s", "m0") in p["dst"] and c.get("ldsdma"): need = max(need, 1)
            if need > dist:
                errs.append(f"{name}: hazard need {need} have {dist}:\n     {p['text']}\n  -> {c['text']}")
            dist += p.get("nop", 1)
            if dist >= 20: break
    return errs
```

```python
import copy, struct, math
from asmlib import Asm, check_hazards

QF = 0x000000
KF = 0x200000
VF = 0x400000
Z1 = 0x600000
Z2 = 0xA00000
Z2N = 0xE00000
ST = 0x1200000
G = 0x1240000
FL = 0x1250000
OU = 0x1400000
WS_SIZE = 268435456

LOG2E = 1.4426950408889634
QSCALE = 0.25 * LOG2E
GC1 = -2.0 * math.sqrt(2.0 / math.pi) * LOG2E
GC2 = GC1 * 0.044715


def f32(x):
    return "0x%08x" % struct.unpack("<I", struct.pack("<f", x))[0]


def fork(a):
    b = Asm()
    b.lds_q = list(a.lds_q)
    b.vm_q = list(a.vm_q)
    return b


def vr(base, n, p="v"):
    return f"{p}[{base}:{base + n - 1}]" if n > 1 else f"{p}{base}"


def srd(a, d, lo, hi, size):
    a(f"s_mov_b32 s{d}, s{lo}")
    a(f"s_mov_b32 s{d+1}, s{hi}")
    a(f"s_mov_b32 s{d+2}, {size}")
    a(f"s_mov_b32 s{d+3}, 0x00020000")


def header(name):
    return f""".globl {name}
.p2align 8
.type {name},@function
{name}:
"""


def desc(name, nvgpr, accum, nsgpr=96):
    return f""".p2align 6
.amdhsa_kernel {name}
  .amdhsa_next_free_vgpr {nvgpr}
  .amdhsa_next_free_sgpr {nsgpr}
  .amdhsa_accum_offset {accum}
  .amdhsa_group_segment_fixed_size 0
  .amdhsa_kernarg_size 96
  .amdhsa_user_sgpr_count 2
  .amdhsa_user_sgpr_kernarg_segment_ptr 1
  .amdhsa_system_sgpr_workgroup_id_x 1
.end_amdhsa_kernel
"""
```

```python
from common import *

SLOT = 32768
NSLOT = 5
D = 2
NB = D + 1
FB = 36
ACC = [64, 80, 96]
TMP = 20
OUT = 28
V_C2, V_SUM, V_SQ = 14, 15, 16


def slot_off(stage):
    s = stage % NSLOT
    return s // 2, (s % 2) * SLOT


def dma_list(stage):
    base = (stage % NSLOT) * SLOT
    out = []
    if stage < 8:
        out.append(([f"s_add_u32 s45, s38, {128*stage}", f"s_add_u32 m0, s48, {base}"], "buffer_load_dwordx4 v2, s[4:7], s45 offen lds", []))
        out.append(([f"s_add_u32 m0, s48, {base+1024}", "s_nop 0"], "buffer_load_dwordx4 v3, s[4:7], s45 offen lds", []))
        out.append(([f"s_add_u32 m0, s44, {base+16384}", "s_nop 0"], "buffer_load_dwordx4 v4, s[8:11], s39 offen lds", ["s_add_u32 s39, s39, s43"]))
        out.append(([f"s_add_u32 m0, s44, {base+24576}", "s_nop 0"], "buffer_load_dwordx4 v4, s[8:11], s40 offen lds", ["s_add_u32 s40, s40, s43"]))
    elif stage < 10:
        for uu in range(4):
            out.append(([f"s_add_u32 m0, s44, {base+uu*8192}", "s_nop 0"], "buffer_load_dwordx4 v4, s[8:11], s41 offen lds", ["s_add_u32 s41, s41, s43"]))
    elif stage == 10:
        for p in range(4):
            out.append(([f"s_add_u32 m0, s44, {base+p*8192}", "s_nop 0"], "buffer_load_dwordx4 v5, s[28:31], s42 offen lds", ["s_add_u32 s42, s42, s49"]))
    return out


def emit_dma(a, item, stage):
    pre, ld, post = item
    for p in pre: a(p)
    if not pre[-1].startswith("s_nop"): a("s_nop 0")
    a.vm(ld, ("st", stage))
    for p in post: a(p)


def xfrag(s):
    return f"a[{4*s}:{4*s+3}]"


def mfma(acc, A, B, first):
    c = "0" if first else vr(acc, 16)
    return f"v_mfma_f32_32x32x16_bf16 {vr(acc,16)}, {A}, {B}, {c}"


class Step:
    def __init__(self, stage, first, reads, mfmas):
        self.stage, self.first, self.reads, self.mfmas = stage, first, reads, mfmas


def tr2(dst, addr, off):
    return [f"ds_read_b64_tr_b16 {vr(dst,2)}, v{addr} offset:{off[0]}", f"ds_read_b64_tr_b16 {vr(dst+2,2)}, v{addr} offset:{off[1]}"]


def steps_phase1():
    out = []
    for u in range(8):
        _, so = slot_off(u)
        for j in range(4):
            s = 4 * u + j
            def mk(b, u=u, j=j, s=s, so=so):
                fb = FB + 8 * b
                r = [f"ds_read_b128 {xfrag(s)}, v{6+j} offset:{so}"]
                r += tr2(fb, 10, [so + 16384 + (16*j) * 128, so + 16384 + (16*j+4) * 128])
                r += tr2(fb + 4, 10, [so + 24576 + (16*j) * 128, so + 24576 + (16*j+4) * 128])
                m = [mfma(ACC[0], vr(fb, 4), xfrag(s), s == 0), mfma(ACC[1], vr(fb+4, 4), xfrag(s), s == 0)]
                return r, m
            out.append((u, j == 0, mk))
    return out


def steps_pair(swap):
    out = []
    for h2 in range(2):
        st = 8 + h2
        _, so = slot_off(st)
        for t in range(8):
            def mk(b, h2=h2, t=t, so=so):
                fb = FB + 8 * b
                r, m = [], []
                for e in range(2):
                    kk = 2 * t + e
                    s = 16 * h2 + kk
                    o = so + kk * 16 * 128
                    r += tr2(fb + 4*e, 10, [o, o + 512])
                    A, B = vr(fb + 4*e, 4), xfrag(s)
                    if swap: A, B = B, A
                    m.append(mfma(ACC[2], A, B, s == 0))
                return r, m
            out.append((st, t == 0, mk))
    return out


def steps_single():
    out = []
    _, so = slot_off(10)
    for t in range(16):
        def mk(b, t=t):
            fb = FB + 8 * b
            r, m = [], []
            for e in range(2):
                s = 2 * t + e
                o = so + s * 16 * 64
                r += tr2(fb + 4*e, 11, [o, o + 256])
                m.append(mfma(ACC[0], vr(fb + 4*e, 4), xfrag(s), s == 0))
            return r, m
        out.append((10, t == 0, mk))
    return out


def steps_gate():
    out = []
    _, so = slot_off(10)
    for t in range(16):
        def mk(b, t=t):
            fb = FB + 8 * b
            r, m = [], []
            for e in range(2):
                s = 2 * t + e
                r.append(f"ds_read_b128 {vr(fb+4*e,4)}, v11 offset:{so + 32*s}")
                m.append(mfma(ACC[0], vr(fb + 4*e, 4), xfrag(s), s == 0))
            return r, m
        out.append((10, t == 0, mk))
    return out


class Pipe:
    def __init__(self):
        self.n = 0
        self.pend = []
        self.dmaq = []
        self.bank = 0
        self.epi = []
    def clone(self):
        p = Pipe(); p.n = self.n; p.pend = list(self.pend); p.dmaq = list(self.dmaq); p.bank = self.bank; p.epi = list(self.epi)
        return p


def emit_epi(a, P, quota):
    k = 0
    while P.epi and (quota is None or k < quota):
        kind, text, ready = P.epi[0]
        if quota is not None and ready > P.n: break
        P.epi.pop(0)
        if kind == "vm": a.vm(text, "out")
        else: a(text)
        if kind != "s": k += 1


def boundary(a, P, stage, nstages, xregs):
    a.comment(f"---- stage {stage}")
    while P.dmaq:
        it, st = P.dmaq.pop(0); emit_dma(a, it, st)
    a.wait(vm=[("st", stage)], lds_all=True)
    a("s_barrier")
    nb, _ = slot_off(stage)
    if nb != P.bank:
        d = (nb - P.bank) * 65536
        regs = ([6, 7, 8, 9] if xregs else []) + [10]
        for r in regs:
            a(f"v_add_u32 v{r}, {d & 0xffffffff:#x}, v{r}")
        P.bank = nb
    if stage >= 1 and stage + 4 < nstages:
        P.dmaq = [(it, stage + 4) for it in dma_list(stage + 4)]


def run_steps(a, P, steps, nstages, quota, dma_every=1):
    for (stage, first, mk) in steps:
        if first: boundary(a, P, stage, nstages, stage < 8)
        r, m = mk(P.n % NB)
        tag = ("rd", P.n)
        for x in r: a.ds(x, tag)
        P.pend.append((tag, m))
        if len(P.pend) > D:
            t, mm = P.pend.pop(0)
            a.wait(lds=[t])
            for x in mm: a(x)
        if P.dmaq and (P.n % dma_every == 0):
            it, st = P.dmaq.pop(0); emit_dma(a, it, st)
        P.n += 1
        emit_epi(a, P, quota)


def drain(a, P, quota=None):
    while P.pend:
        t, mm = P.pend.pop(0)
        a.wait(lds=[t])
        for x in mm: a(x)
        P.n += 1
        if quota: emit_epi(a, P, quota)


def epi_cvt_store(acc, scale, stores, ready):
    e = []
    for g in range(2):
        o = OUT + 4 * g
        if scale:
            for r in range(8): e.append(("v", f"v_mul_f32 v{acc+8*g+r}, s52, v{acc+8*g+r}", ready))
        for q in range(4):
            e.append(("v", f"v_cvt_pk_bf16_f32 v{o+q}, v{acc+8*g+2*q}, v{acc+8*g+2*q+1}", ready))
        pre, st = stores[g]
        for p in pre: e.append(("s", p, ready))
        e.append(("vm", st.format(d=vr(o, 4)), ready))
    return e


def epi_gelu(acc, soff, ready):
    e = []
    for g in range(2):
        o = OUT + 4 * g
        for half in range(2):
            xs = [acc + 8 * g + 4 * half + i for i in range(4)]
            ts = [TMP + 4 * half + i for i in range(4)]
            for x, t in zip(xs, ts): e.append(f"v_mul_f32 v{t}, v{x}, v{x}")
            for x, t in zip(xs, ts): e.append(f"v_fmaak_f32 v{t}, v{t}, v{V_C2}, {f32(GC1)}")
            for x, t in zip(xs, ts): e.append(f"v_mul_f32 v{t}, v{t}, v{x}")
            for x, t in zip(xs, ts): e.append(f"v_exp_f32 v{t}, v{t}")
            for x, t in zip(xs, ts): e.append(f"v_add_f32 v{t}, 1.0, v{t}")
            for x, t in zip(xs, ts): e.append(f"v_rcp_f32 v{t}, v{t}")
            for x, t in zip(xs, ts): e.append(f"v_mul_f32 v{t}, v{t}, v{x}")
            for i, t in enumerate(ts):
                e.append(f"v_add_f32 v{V_SUM}, v{V_SUM}, v{t}")
                e.append(f"v_fmac_f32 v{V_SQ}, v{t}, v{t}")
            e.append(f"v_cvt_pk_bf16_f32 v{o+2*half}, v{ts[0]}, v{ts[1]}")
            e.append(f"v_cvt_pk_bf16_f32 v{o+2*half+1}, v{ts[2]}, v{ts[3]}")
        e.append(("vm", f"buffer_store_dwordx4 {vr(o,4)}, v{12+g}, s[12:15], s{soff} offen"))
    return [(x[0], x[1], ready) if isinstance(x, tuple) else ("v", x, ready) for x in e]


def k1():
    a = Asm()
    a("s_cmp_ge_u32 s2, 256")
    a("s_cbranch_scc1 k1_exit")
    a("s_load_dwordx4 s[16:19], s[0:1], 0")
    a("s_load_dwordx2 s[20:21], s[0:1], 32")
    a("s_load_dwordx2 s[22:23], s[0:1], 64")
    a("s_load_dwordx2 s[24:25], s[0:1], 88")
    a("""
    v_and_b32 v1, 63, v0
    v_lshrrev_b32 v17, 6, v0
    s_and_b32 s45, s2, 7
    v_readfirstlane_b32 s32, v17
    s_lshr_b32 s46, s2, 3
    s_and_b32 s33, s45, 1
    s_lshl_b32 s33, s33, 3
    s_and_b32 s47, s46, 7
    s_add_u32 s33, s33, s47
    s_lshr_b32 s34, s45, 1
    s_lshr_b32 s47, s46, 3
    s_lshl_b32 s47, s47, 2
    s_add_u32 s34, s34, s47
    s_lshr_b32 s35, s34, 3
    s_and_b32 s36, s34, 7
    s_lshl_b32 s44, s32, 10
    s_lshl_b32 s48, s32, 11
    s_and_b32 s50, s32, 3
    s_lshl_b32 s47, s33, 2
    s_add_u32 s50, s50, s47
    s_lshr_b32 s51, s32, 2
    s_lshl_b32 s38, s33, 17
    s_lshl_b32 s47, s32, 14
    s_add_u32 s38, s38, s47
    s_lshl_b32 s37, s35, 9
    s_add_u32 s37, s37, 3072
    s_lshl_b32 s43, s37, 6
    s_lshl_b32 s49, s37, 7
    s_lshl_b32 s54, s37, 9
    s_mul_i32 s55, s32, s37
    s_lshl_b32 s55, s55, 3
    """)
    a("""
    v_lshrrev_b32 v17, 3, v1
    v_and_b32 v18, 7, v1
    v_lshrrev_b32 v19, 4, v1
    v_xor_b32 v2, v18, v19
    v_lshlrev_b32 v2, 4, v2
    v_lshl_add_u32 v2, v17, 10, v2
    v_xor_b32 v3, 64, v2
    v_add_u32 v3, 0x2000, v3
    """)
    a("""
    v_and_b32 v19, 1, v19
    v_lshlrev_b32 v19, 2, v19
    v_xor_b32 v4, v18, v19
    v_lshlrev_b32 v4, 4, v4
    v_mul_lo_u32 v17, v17, s37
    v_add_u32 v4, v4, v17
    """)
    a("""
    v_and_b32 v17, 31, v1
    v_lshrrev_b32 v18, 5, v1
    v_bfe_u32 v19, v1, 1, 3
    v_xor_b32 v19, v19, v18
    v_lshlrev_b32 v19, 4, v19
    v_lshl_add_u32 v6, v17, 7, v19
    s_and_b32 s47, s32, 3
    s_lshl_b32 s47, s47, 12
    v_add_u32 v6, s47, v6
    v_xor_b32 v7, 32, v6
    v_xor_b32 v8, 64, v6
    v_xor_b32 v9, 96, v6
    """)
    a("""
    v_bfe_u32 v20, v1, 2, 2
    v_lshl_add_u32 v21, v18, 3, v20
    v_and_b32 v22, 1, v1
    v_bfe_u32 v23, v1, 1, 1
    v_lshl_add_u32 v22, v22, 1, v23
    v_lshlrev_b32 v22, 3, v22
    v_bfe_u32 v23, v1, 4, 1
    v_lshl_add_u32 v22, v23, 5, v22
    v_lshl_add_u32 v11, v21, 6, v22
    s_lshl_b32 s47, s51, 6
    v_add_u32 v22, s47, v22
    v_bfe_u32 v23, v1, 3, 1
    v_lshlrev_b32 v23, 6, v23
    v_xor_b32 v22, v22, v23
    v_lshl_add_u32 v10, v21, 7, v22
    v_lshlrev_b32 v12, 4, v1
    """)
    a(f"v_mov_b32 v{V_C2}, {f32(GC2)}")
    a(f"v_mov_b32 v{V_SUM}, 0")
    a(f"v_mov_b32 v{V_SQ}, 0")
    a(f"s_mov_b32 s52, {f32(QSCALE)}")
    a("s_waitcnt lgkmcnt(0)")
    srd(a, 4, 16, 17, 2097152)
    srd(a, 12, 24, 25, WS_SIZE)
    a("s_cmp_eq_u32 s35, 0")
    a("s_cbranch_scc0 k1_setup_z")
    srd(a, 8, 18, 19, 512 * 3072)
    srd(a, 28, 22, 23, 1024)
    a(f"""
    s_lshl_b32 s39, s36, 7
    s_add_u32 s39, s39, s55
    s_add_u32 s40, s39, 1024
    s_add_u32 s41, s39, 2048
    s_mov_b32 s42, s44
    v_mov_b32 v5, v12
    v_lshlrev_b32 v11, 4, v18
    s_lshl_b32 s60, s36, 2
    s_lshl_b32 s47, s51, 1
    s_add_u32 s60, s60, s47
    s_lshl_b32 s60, s60, 16
    s_lshl_b32 s47, s50, 10
    s_add_u32 s60, s60, s47
    s_add_u32 s61, s60, {KF}
    s_add_u32 s62, s60, {VF}
    s_add_u32 s60, s60, {QF}
    v_bfe_u32 v13, v1, 4, 1
    v_lshlrev_b32 v13, 16, v13
    v_lshl_add_u32 v13, v18, 8, v13
    v_and_b32 v19, 15, v1
    v_lshl_add_u32 v13, v19, 4, v13
    s_branch k1_main
    """)
    a.label("k1_setup_z")
    srd(a, 8, 20, 21, 512 * 3584)
    srd(a, 28, 20, 21, 512 * 3584)
    a(f"""
    s_mul_i32 s56, s36, 448
    s_and_b32 s47, s36, 1
    s_cmp_eq_u32 s47, 0
    s_cselect_b32 s57, 0, 64
    s_cselect_b32 s58, 384, 0
    s_add_u32 s57, s57, s56
    s_add_u32 s58, s58, s56
    s_add_u32 s39, s57, s55
    s_add_u32 s40, s39, 128
    s_add_u32 s41, s39, 256
    s_lshl_b32 s42, s55, 1
    s_add_u32 s42, s42, s58
    v_lshrrev_b32 v19, 2, v1
    v_mul_lo_u32 v5, v19, s37
    v_and_b32 v19, 3, v1
    v_lshl_add_u32 v5, v19, 4, v5
    s_lshr_b32 s57, s57, 6
    s_add_u32 s57, s57, s51
    s_lshr_b32 s58, s58, 6
    s_cmp_lt_u32 s36, 4
    s_cbranch_scc0 k1_setup_z2
    s_mul_i32 s59, s50, {56*1024}
    s_add_u32 s59, s59, {Z1}
    s_mov_b32 s56, 11
    v_add_u32 v13, 1024, v12
    s_branch k1_setup_zc
    """)
    a.label("k1_setup_z2")
    a(f"""
    s_lshl_b32 s59, s50, 11
    s_add_u32 s59, s59, {Z2 - 28*131072}
    s_mov_b32 s56, 17
    v_lshlrev_b32 v12, 4, v18
    v_lshl_add_u32 v12, v17, 6, v12
    v_add_u32 v13, 32, v12
    """)
    a.label("k1_setup_zc")
    a("""
    s_lshl_b32 s60, s57, s56
    s_add_u32 s60, s60, s59
    s_lshl_b32 s47, 2, s56
    s_add_u32 s61, s60, s47
    s_add_u32 s62, s61, s47
    s_lshl_b32 s63, s58, s56
    s_add_u32 s63, s63, s59
    """)
    a.label("k1_main")
    NST = 11
    P = Pipe()
    for st in range(5):
        for it in dma_list(st): emit_dma(a, it, st)
    run_steps(a, P, steps_phase1(), NST, None)
    a("s_cmp_eq_u32 s35, 0")
    a("s_cbranch_scc0 k1_z")
    rdy = P.n + D + 2
    q = fork(a); Q = P.clone()
    st_qk = lambda s: [([], f"buffer_store_dwordx4 {{d}}, v12, s[12:15], s{s} offen"),
                       ([f"s_add_u32 s{s}, s{s}, 0x10000"], f"buffer_store_dwordx4 {{d}}, v12, s[12:15], s{s} offen")]
    Q.epi = epi_cvt_store(ACC[0], True, st_qk(60), rdy) + epi_cvt_store(ACC[1], False, st_qk(61), rdy)
    run_steps(q, Q, steps_pair(True), NST, 6)
    q("s_cmp_eq_u32 s34, 0")
    q("s_cbranch_scc1 k1_gate")
    q1 = fork(q); Q1 = Q.clone()
    st_v = [([], "buffer_store_dwordx4 {d}, v13, s[12:15], s62 offen"), ([], "buffer_store_dwordx4 {d}, v13, s[12:15], s62 offen offset:512")]
    q1.label("k1_qkv_tail")
    drain(q1, Q1)
    emit_epi(q1, Q1, None)
    q1("s_nop 7"); q1("s_nop 3")
    Q1.epi = epi_cvt_store(ACC[2], False, st_v, 0)
    emit_epi(q1, Q1, None)
    q1("s_endpgm")
    q2 = fork(q); Q2 = Q.clone()
    q2.label("k1_gate")
    boundary(q2, Q2, 10, NST, False)
    q2("s_cmp_eq_u32 s51, 0")
    q2("s_cbranch_scc0 k1_qkv_tail")
    Q2.epi += epi_cvt_store(ACC[2], False, st_v, Q2.n + D + 3)
    gs = [(st, False, mk) for (st, f, mk) in steps_gate()]
    run_steps(q2, Q2, gs, NST, 6)
    drain(q2, Q2)
    emit_epi(q2, Q2, None)
    q2("s_nop 7"); q2("s_nop 3")
    q2(f"""
    v_mul_f32 v20, {f32(-LOG2E)}, v{ACC[0]}
    v_exp_f32 v20, v20
    v_lshlrev_b32 v21, 2, v17
    v_add_f32 v20, 1.0, v20
    v_rcp_f32 v20, v20
    s_lshl_b32 s47, s50, 7
    s_add_u32 s47, s47, {G}
    buffer_store_dword v20, v21, s[12:15], s47 offen
    s_endpgm
    """)
    z = fork(a); Z = P.clone()
    z.label("k1_z")
    Z.epi = epi_gelu(ACC[0], 60, rdy) + epi_gelu(ACC[1], 61, rdy)
    run_steps(z, Z, steps_pair(False), NST, 18)
    boundary(z, Z, 10, NST, False)
    z("s_cmp_eq_u32 s51, 0")
    z("s_cbranch_scc0 k1_zb")
    za = fork(z); ZA = Z.clone()
    assert not any(f"v{ACC[0]+i}" in t.replace(",", " ").split() for (_, t, _) in ZA.epi for i in range(16)), "accA epilogue not finished"
    ZA.epi += epi_gelu(ACC[2], 62, ZA.n + D + 2)
    ss = [(st, False, mk) for (st, f, mk) in steps_single()]
    run_steps(za, ZA, ss, NST, 14)
    drain(za, ZA, 14)
    emit_epi(za, ZA, None)
    za("s_nop 7"); za("s_nop 3")
    ZA.epi = epi_gelu(ACC[0], 63, 0)
    emit_epi(za, ZA, None)
    za("s_branch k1_stats")
    zb = fork(z); ZB = Z.clone()
    zb.label("k1_zb")
    drain(zb, ZB, 14)
    emit_epi(zb, ZB, None)
    zb("s_nop 7"); zb("s_nop 3")
    ZB.epi = epi_gelu(ACC[2], 62, 0)
    emit_epi(zb, ZB, None)
    zb.label("k1_stats")
    zb(f"""
    s_cmp_lt_u32 s36, 4
    s_cbranch_scc1 k1_exit
    s_nop 1
    v_permlane32_swap_b32 v{V_SUM}, v{V_SQ}
    v_lshlrev_b32 v21, 6, v17
    v_lshl_add_u32 v21, v18, 2, v21
    v_add_f32 v20, v{V_SUM}, v{V_SQ}
    s_sub_u32 s47, s36, 4
    s_lshl_b32 s47, s47, 1
    s_add_u32 s47, s47, s51
    s_lshl_b32 s47, s47, 3
    s_lshl_b32 s46, s50, 11
    s_add_u32 s47, s47, s46
    s_add_u32 s47, s47, {ST}
    buffer_store_dword v20, v21, s[12:15], s47 offen
    """)
    zb.label("k1_exit")
    zb("s_endpgm")
    paths = {"qkv": a.lines + q.lines + q1.lines, "gate": a.lines + q.lines + q2.lines,
             "za": a.lines + z.lines + za.lines + zb.lines[zb.lines.index('k1_stats:'):], "zb": a.lines + z.lines + zb.lines,
             "gateB": q2.lines[:12] + q1.lines}
    errs = []
    for n, l in paths.items(): errs += check_hazards(l, "k1/" + n)
    text = header("k1_kernel") + a.text() + q.text() + q1.text() + q2.text() + z.text() + za.text() + zb.text()
    return text, desc("k1_kernel", 256, 128), errs
```

```python
from common import *

K2_GRID = 512
K2_LDS = 73728

QFR = 4
KB = [8, 12]
VB = [16, 24]
PB = 32
SB = [48, 64]
OB = 80
CB = 96
A_K, A_V, A_DMA, V_G = 40, 41, 42, 43
STAND = "-4.0"


def softmax_pv(a, S, V, first_wait=None):
    for j in range(2):
        for r in range(8):
            a(f"v_exp_f32 v{S+8*j+r}, v{S+8*j+r}")
        for q in range(4):
            a(f"v_cvt_pk_bf16_f32 v{PB+4*j+q}, v{S+8*j+2*q}, v{S+8*j+2*q+1}")
        if j == 0 and first_wait: a.wait(lds=[first_wait])
        if j == 1: a("s_nop 1")
        if j == 1:
            a(f"v_mfma_f32_32x32x16_bf16 {vr(OB,16)}, {vr(V+4,4)}, {vr(PB+4,4)}, {vr(OB,16)}")
        else:
            pend = f"v_mfma_f32_32x32x16_bf16 {vr(OB,16)}, {vr(V,4)}, {vr(PB,4)}, {vr(OB,16)}"
            a(f"v_exp_f32 v{S+8}, v{S+8}")
            a(f"v_exp_f32 v{S+9}, v{S+9}")
            a(pend)
    return


def softmax_pv2(a, S, V, first_wait=None):
    for r in range(8): a(f"v_exp_f32 v{S+r}, v{S+r}")
    for q in range(4): a(f"v_cvt_pk_bf16_f32 v{PB+q}, v{S+2*q}, v{S+2*q+1}")
    a(f"v_exp_f32 v{S+8}, v{S+8}")
    a(f"v_exp_f32 v{S+9}, v{S+9}")
    if first_wait: a.wait(lds=[first_wait])
    a(f"v_mfma_f32_32x32x16_bf16 {vr(OB,16)}, {vr(V,4)}, {vr(PB,4)}, {vr(OB,16)}")
    for r in range(10, 16): a(f"v_exp_f32 v{S+r}, v{S+r}")
    for q in range(4): a(f"v_cvt_pk_bf16_f32 v{PB+4+q}, v{S+8+2*q}, v{S+8+2*q+1}")
    a("s_nop 1")
    a(f"v_mfma_f32_32x32x16_bf16 {vr(OB,16)}, {vr(V+4,4)}, {vr(PB+4,4)}, {vr(OB,16)}")


def rdK(a, b):
    a.ds(f"ds_read_b128 {vr(KB[b%2],4)}, v{A_K} offset:{b*1024}", ("k", b))


def rdV(a, b):
    a("s_mov_b64 exec, s[36:37]")
    a.ds(f"ds_read_b128 {vr(VB[b%2],4)}, v{A_V} offset:{b*1024}", ("v", b))
    a.ds(f"ds_read_b128 {vr(VB[b%2]+4,4)}, v{A_V} offset:{b*1024+512}", ("v", b))
    a("s_mov_b64 exec, -1")


def smfma(a, b):
    a.wait(lds=[("k", b)])
    a(f"v_mfma_f32_32x32x16_bf16 {vr(SB[b%2],16)}, {vr(KB[b%2],4)}, {vr(QFR,4)}, {STAND}")


def attn_dma(a, tag):
    a("s_mov_b32 m0, s42")
    a("s_nop 0")
    a.vm(f"buffer_load_dwordx4 v{A_DMA}, s[12:15], s40 offen lds", tag)
    a.vm(f"buffer_load_dwordx4 v{A_DMA}, s[12:15], s40 offen offset:1024 lds", tag)
    a("s_add_u32 m0, s42, 16384")
    a("s_add_u32 s40, s40, 16384")
    a.vm(f"buffer_load_dwordx4 v{A_DMA}, s[12:15], s41 offen lds", tag)
    a.vm(f"buffer_load_dwordx4 v{A_DMA}, s[12:15], s41 offen offset:1024 lds", tag)
    a("s_add_u32 s41, s41, 16384")
    a("s_xor_b32 s42, s42, 32768")


def attention(a):
    a(f"""
    s_lshr_b32 s35, s34, 3
    s_lshl_b32 s44, s33, 2
    s_add_u32 s35, s35, s44
    s_and_b32 s38, s34, 7
    s_lshl_b32 s38, s38, 3
    s_add_u32 s38, s38, s32
    s_lshl_b32 s39, s35, 16
    s_lshl_b32 s42, s32, 11
    s_add_u32 s40, s39, s42
    s_add_u32 s41, s40, {VF}
    s_add_u32 s40, s40, {KF}
    v_lshlrev_b32 v{A_DMA}, 4, v1
    """)
    attn_dma(a, "c0")
    a(f"""
    s_lshl_b32 s44, s38, 10
    s_add_u32 s44, s44, s39
    s_add_u32 s44, s44, {QF}
    s_lshl_b32 s45, s38, 7
    s_add_u32 s45, s45, {G}
    v_lshlrev_b32 v44, 2, v2
    """)
    a.vm(f"buffer_load_dwordx4 {vr(QFR,4)}, v{A_DMA}, s[12:15], s44 offen", "c0")
    a.vm(f"buffer_load_dword v{V_G}, v44, s[12:15], s45 offen", "c0")
    attn_dma(a, "c1")
    a(f"""
    s_mov_b32 s36, 0x0000ffff
    s_mov_b32 s37, 0x0000ffff
    v_mov_b32 v{A_K}, v{A_DMA}
    v_and_b32 v44, 15, v2
    v_lshlrev_b32 v44, 4, v44
    v_lshl_add_u32 v{A_V}, v3, 8, v44
    v_add_u32 v{A_V}, 16384, v{A_V}
    """)
    for r in range(16): a(f"v_mov_b32 v{VB[0]+r}, 0x3f803f80")
    for r in range(16): a(f"v_mov_b32 v{OB+r}, 0")
    for r in range(16): a(f"v_mov_b32 v{SB[1]+r}, 0xc47a0000")
    a("s_mov_b32 s43, 0")
    a("s_waitcnt vmcnt(4)")
    a.label("k2_aloop")
    a.lds_q = []; a.vm_q = []
    a("s_waitcnt lgkmcnt(0)")
    a("s_barrier")
    a("s_sub_u32 s44, s43, 1")
    a("s_cmp_lt_u32 s44, 2")
    a("s_cbranch_scc0 k2_anodma")
    attn_dma(a, "cx")
    a.label("k2_anodma")
    rdK(a, 0); rdK(a, 1); rdV(a, 0)
    softmax_pv2(a, SB[1], VB[1])
    smfma(a, 0)
    for b in range(15):
        if b + 2 <= 15: rdK(a, b + 2) if b > 0 else None
        if b == 0:
            smfma(a, 1); rdK(a, 2); rdV(a, 1)
            a("s_nop 4")
        else:
            rdV(a, b + 1)
            smfma(a, b + 1)
        softmax_pv2(a, SB[b % 2], VB[b % 2], ("v", b))
    a(f"v_xor_b32 v{A_K}, 0x8000, v{A_K}")
    a(f"v_xor_b32 v{A_V}, 0x8000, v{A_V}")
    a("s_add_u32 s43, s43, 1")
    a("s_cmp_lt_u32 s43, 4")
    a("s_waitcnt vmcnt(0)")
    a("s_cbranch_scc1 k2_aloop")
    a("s_waitcnt lgkmcnt(0)")
    a.lds_q = []
    softmax_pv2(a, SB[1], VB[1])
    a("s_nop 7"); a("s_nop 3")
    a(f"v_add_f32_e64 v44, |v{OB}|, |v{OB+1}|")
    for r in range(2, 8): a(f"v_add_f32_e64 v44, v44, |v{OB+r}|")
    a(f"""
    v_cmp_gt_f32 vcc, 0x7f800000, v44
    s_mov_b64 s[46:47], vcc
    v_cmp_lt_f32 vcc, {f32(2.0**-40)}, v{OB+8}
    s_and_b64 s[46:47], s[46:47], vcc
    v_cmp_gt_f32 vcc, {f32(2.0**40)}, v{OB+8}
    s_and_b64 s[46:47], s[46:47], vcc
    s_cmp_eq_u64 s[46:47], -1
    s_cbranch_scc0 k2_afall
    """)
    a.label("k2_aepi")
    a(f"v_rcp_f32 v44, v{OB+8}")
    a(f"s_mul_i32 s44, s38, {88*1024}")
    a(f"v_mul_f32 v44, v44, v{V_G}")
    a(f"s_lshl_b32 s45, s35, 10")
    for r in range(8): a(f"v_mul_f32 v{OB+r}, v{OB+r}, v44")
    a(f"s_add_u32 s44, s44, s45")
    a(f"s_add_u32 s44, s44, {OU}")
    for q in range(4): a(f"v_cvt_pk_bf16_f32 v{PB+q}, v{OB+2*q}, v{OB+2*q+1}")
    a(f"buffer_store_dwordx4 {vr(PB,4)}, v{A_DMA}, s[12:15], s44 offen")
    a("s_endpgm")
    a.label("k2_afall")
    a(f"""
    s_add_u32 s40, s39, {KF}
    s_add_u32 s41, s39, {VF}
    s_mov_b32 s43, 0
    v_mov_b32 v44, 0xff800000
    v_xor_b32 v{A_V}, 16384, v{A_V}
    """)
    a.label("k2_af1")
    a(f"""
    buffer_load_dwordx4 {vr(KB[0],4)}, v{A_DMA}, s[12:15], s40 offen
    s_add_u32 s40, s40, 1024
    s_waitcnt vmcnt(0)
    v_mfma_f32_32x32x16_bf16 {vr(SB[0],16)}, {vr(KB[0],4)}, {vr(QFR,4)}, 0
    s_nop 7
    s_nop 3
    """)
    for r in range(0, 16, 2): a(f"v_max3_f32 v44, v44, v{SB[0]+r}, v{SB[0]+r+1}")
    a("""
    s_add_u32 s43, s43, 1
    s_cmp_lt_u32 s43, 64
    s_cbranch_scc1 k2_af1
    v_mov_b32 v45, v44
    s_nop 1
    v_permlane32_swap_b32 v44, v45
    s_nop 1
    v_max_f32 v44, v44, v45
    """)
    for r in range(16): a(f"v_sub_f32 v{CB+r}, 0, v44")
    for r in range(16): a(f"v_mov_b32 v{OB+r}, 0")
    a(f"s_add_u32 s40, s39, {KF}")
    a("s_mov_b32 s43, 0")
    a.label("k2_af2")
    a(f"""
    buffer_load_dwordx4 {vr(KB[0],4)}, v{A_DMA}, s[12:15], s40 offen
    s_mov_b64 exec, s[36:37]
    buffer_load_dwordx4 {vr(VB[0],4)}, v{A_V}, s[12:15], s41 offen
    buffer_load_dwordx4 {vr(VB[0]+4,4)}, v{A_V}, s[12:15], s41 offen offset:512
    s_mov_b64 exec, -1
    s_add_u32 s40, s40, 1024
    s_add_u32 s41, s41, 1024
    s_waitcnt vmcnt(0)
    v_mfma_f32_32x32x16_bf16 {vr(SB[0],16)}, {vr(KB[0],4)}, {vr(QFR,4)}, {vr(CB,16)}
    s_nop 7
    s_nop 3
    """)
    softmax_pv2(a, SB[0], VB[0])
    a("""
    s_add_u32 s43, s43, 1
    s_cmp_lt_u32 s43, 64
    s_nop 7
    s_nop 3
    s_cbranch_scc1 k2_af2
    s_branch k2_aepi
    """)


GST = 24576
G_ACC = 64
G_FB = [16, 32]
G_Z1 = 48
G_AZ, G_AW, G_DZ, G_DW, G_B, G_G = 4, 5, 9, 10, 11, 12


def gemm_dma(a, slot, tag):
    a(f"s_add_u32 m0, s42, {slot*GST}")
    a("s_nop 0")
    a.vm(f"buffer_load_dwordx4 v{G_DZ}, s[12:15], s40 offen lds", tag)
    a.vm(f"buffer_load_dwordx4 v{G_DZ}, s[12:15], s40 offen offset:1024 lds", tag)
    a(f"s_add_u32 m0, s43, {slot*GST}")
    a("s_add_u32 s40, s40, 4096")
    a.vm(f"buffer_load_dwordx4 v{G_DW}, s[8:11], s41 offen lds", tag)
    a("s_add_u32 s41, s41, 128")


def gemm_reads(a, slot, half, tag):
    fb = G_FB[half]
    for e in range(2):
        j = 2 * half + e
        o = slot * GST + 16 * j * 64
        a.ds(f"ds_read_b64_tr_b16 {vr(fb+8*e,2)}, v{G_AZ} offset:{o}", tag)
        a.ds(f"ds_read_b64_tr_b16 {vr(fb+8*e+2,2)}, v{G_AZ} offset:{o+256}", tag)
        a.ds(f"ds_read_b128 {vr(fb+8*e+4,4)}, v{G_AW+j} offset:{slot*GST}", tag)


def gemm_mfma(a, half):
    fb = G_FB[half]
    for e in range(2):
        a(f"v_mfma_f32_32x32x16_bf16 {vr(G_ACC,16)}, {vr(fb+8*e,4)}, {vr(fb+8*e+4,4)}, {vr(G_ACC,16)}")


def gemm_stage(a, slot, dma, vmwait):
    a(f"s_waitcnt vmcnt({vmwait}) lgkmcnt(0)")
    a.lds_q = []
    a("s_barrier")
    gemm_reads(a, slot, 0, "h0")
    gemm_mfma(a, 1)
    if dma: gemm_dma(a, (slot + 2) % 3, "x")
    gemm_reads(a, slot, 1, "h1")
    a.wait(lds=["h0"])
    gemm_mfma(a, 0)


def gemm(a):
    a(f"""
    s_mul_i32 s44, s34, 37
    s_lshr_b32 s44, s44, 8
    s_mul_i32 s45, s44, 7
    s_sub_u32 s35, s34, s45
    s_lshl_b32 s38, s33, 2
    s_add_u32 s38, s38, s44
    """)
    a(f"""
    s_lshl_b32 s44, s35, 2
    s_lshr_b32 s45, s32, 1
    s_add_u32 s44, s44, s45
    s_lshl_b32 s40, s44, 17
    s_and_b32 s45, s32, 1
    s_lshl_b32 s45, s45, 11
    s_add_u32 s40, s40, s45
    s_add_u32 s40, s40, {Z2N}
    s_lshl_b32 s41, s38, 3
    s_add_u32 s41, s41, s32
    s_lshl_b32 s41, s41, 15
    s_lshl_b32 s42, s32, 11
    s_lshl_b32 s43, s32, 10
    s_add_u32 s43, s43, 16384
    v_lshlrev_b32 v{G_DZ}, 4, v1
    v_lshrrev_b32 v13, 3, v1
    v_and_b32 v14, 7, v1
    v_lshrrev_b32 v15, 4, v1
    s_and_b32 s45, s32, 1
    s_lshl_b32 s45, s45, 2
    v_xor_b32 v15, s45, v15
    v_xor_b32 v14, v14, v15
    v_lshlrev_b32 v14, 4, v14
    v_lshl_add_u32 v{G_DW}, v13, 12, v14
    """)
    gemm_dma(a, 0, "s0")
    gemm_dma(a, 1, "s1")
    a(f"""
    s_lshr_b32 s46, s32, 2
    s_lshl_b32 s47, s38, 1
    s_add_u32 s46, s46, s47
    s_and_b32 s47, s32, 3
    s_lshl_b32 s48, s35, 2
    s_add_u32 s47, s47, s48
    s_mul_i32 s48, s46, {56*1024}
    s_lshl_b32 s49, s47, 11
    s_add_u32 s48, s48, s49
    s_add_u32 s48, s48, {Z1}
    s_mul_i32 s50, s46, {88*1024}
    s_add_u32 s50, s50, s49
    s_add_u32 s50, s50, {OU + 32*1024}
    s_lshl_b32 s51, s46, 7
    s_add_u32 s51, s51, {G}
    s_lshl_b32 s52, s46, 6
    v_lshlrev_b32 v13, 2, v2
    v_lshlrev_b32 v14, 1, v2
    """)
    a.vm(f"buffer_load_dwordx4 {vr(G_Z1,4)}, v{G_DZ}, s[12:15], s48 offen", "e")
    a.vm(f"buffer_load_dwordx4 {vr(G_Z1+4,4)}, v{G_DZ}, s[12:15], s48 offen offset:1024", "e")
    a.vm(f"buffer_load_dword v{G_G}, v13, s[12:15], s51 offen", "e")
    a.vm(f"buffer_load_ushort v{G_B}, v14, s[28:31], s52 offen", "e")
    a(f"""
    v_bfe_u32 v13, v1, 2, 2
    v_lshl_add_u32 v13, v3, 3, v13
    v_and_b32 v14, 1, v1
    v_bfe_u32 v15, v1, 1, 1
    v_lshl_add_u32 v14, v14, 1, v15
    v_lshlrev_b32 v14, 3, v14
    v_bfe_u32 v15, v1, 4, 1
    v_lshl_add_u32 v14, v15, 5, v14
    v_lshl_add_u32 v{G_AZ}, v13, 6, v14
    s_and_b32 s45, s32, 3
    s_lshl_b32 s45, s45, 12
    v_add_u32 v{G_AZ}, s45, v{G_AZ}
    v_bfe_u32 v13, v1, 1, 3
    v_xor_b32 v13, v13, v3
    v_lshlrev_b32 v13, 4, v13
    v_lshl_add_u32 v{G_AW}, v2, 7, v13
    s_lshr_b32 s45, s32, 2
    s_lshl_b32 s45, s45, 12
    s_add_u32 s45, s45, 16384
    v_add_u32 v{G_AW}, s45, v{G_AW}
    v_xor_b32 v{G_AW+1}, 32, v{G_AW}
    v_xor_b32 v{G_AW+2}, 64, v{G_AW}
    v_xor_b32 v{G_AW+3}, 96, v{G_AW}
    """)
    for r in range(16): a(f"v_mov_b32 v{G_ACC+r}, 0")
    for r in range(16): a(f"v_mov_b32 v{G_FB[1]+r}, 0")
    gemm_stage(a, 0, True, 7)
    a("s_mov_b32 s53, 0")
    a("s_waitcnt vmcnt(3)")
    a.label("k2_gloop")
    for s in (1, 2, 0):
        gemm_stage(a, s, True, 3)
    a("s_add_u32 s53, s53, 1")
    a("s_cmp_lt_u32 s53, 9")
    a("s_cbranch_scc1 k2_gloop")
    gemm_stage(a, 1, True, 3)
    gemm_stage(a, 2, True, 3)
    gemm_stage(a, 0, False, 3)
    gemm_stage(a, 1, False, 0)
    a("s_waitcnt lgkmcnt(0)")
    gemm_mfma(a, 1)
    a(f"""
    v_sub_f32 v{G_G}, 1.0, v{G_G}
    v_lshlrev_b32 v{G_B}, 16, v{G_B}
    v_mul_f32 v{G_B}, v{G_B}, v{G_G}
    """)
    T = 16
    for q in range(8):
        a(f"v_lshlrev_b32 v{T+2*q}, 16, v{G_Z1+q}")
        a(f"v_and_b32 v{T+2*q+1}, 0xffff0000, v{G_Z1+q}")
    for r in range(16): a(f"v_fma_f32 v{G_ACC+r}, v{G_ACC+r}, v{G_G}, v{G_B}")
    for r in range(16): a(f"v_mul_f32 v{G_ACC+r}, v{G_ACC+r}, v{T+r}")
    for q in range(8): a(f"v_cvt_pk_bf16_f32 v{G_Z1+q}, v{G_ACC+2*q}, v{G_ACC+2*q+1}")
    a(f"buffer_store_dwordx4 {vr(G_Z1,4)}, v{G_DZ}, s[12:15], s50 offen")
    a(f"buffer_store_dwordx4 {vr(G_Z1+4,4)}, v{G_DZ}, s[12:15], s50 offen offset:1024")
    a("s_endpgm")


def k2():
    a = Asm()
    a(f"""
    s_cmp_ge_u32 s2, {K2_GRID}
    s_cbranch_scc1 k2_exit
    s_load_dwordx2 s[16:17], s[0:1], 40
    s_load_dwordx2 s[18:19], s[0:1], 48
    s_load_dwordx2 s[24:25], s[0:1], 88
    v_and_b32 v1, 63, v0
    v_lshrrev_b32 v4, 6, v0
    v_and_b32 v2, 31, v0
    v_readfirstlane_b32 s32, v4
    v_bfe_u32 v3, v0, 5, 1
    s_and_b32 s33, s2, 7
    s_lshr_b32 s44, s2, 3
    s_lshr_b32 s34, s44, 1
    s_lshr_b32 s45, s44, 5
    s_xor_b32 s45, s45, s44
    s_and_b32 s45, s45, 1
    s_waitcnt lgkmcnt(0)
    """)
    srd(a, 12, 24, 25, WS_SIZE)
    a("s_cmp_eq_u32 s45, 0")
    a("s_cbranch_scc0 k2_gemm")
    at = fork(a)
    attention(at)
    g = fork(a)
    g.label("k2_gemm")
    g("s_cmp_ge_u32 s34, 28")
    g("s_cbranch_scc1 k2_exit")
    srd(g, 8, 16, 17, 2048 * 4096)
    srd(g, 28, 18, 19, 4096)
    gemm(g)
    g.label("k2_exit")
    g("s_endpgm")
    def loopdup(lines, lab):
        i = lines.index(lab + ":")
        j = max(k for k, l in enumerate(lines) if l.strip().endswith(" " + lab))
        return lines[i:j + 1] * 2
    errs = check_hazards(a.lines + at.lines, "k2/attn") + check_hazards(a.lines + g.lines, "k2/gemm")
    for l in ("k2_aloop", "k2_af1", "k2_af2"): errs += check_hazards(loopdup(at.lines, l), "k2/" + l)
    errs += check_hazards(loopdup(g.lines, "k2_gloop"), "k2/gloop")
    return header("k2_kernel") + a.text() + at.text() + g.text(), desc("k2_kernel", 112, 112), errs
```

```python
from common import *

K3_LDS = 163840
K3_BLOCK = 512
SLOT = 32768
NST = 11
ACC = 64
FB = [16, 32, 48]


def dma(a, st):
    base = (st % 5) * SLOT
    S = "s[8:11]" if st < 4 else "s[28:31]"
    if st == 4: a("s_mov_b32 s41, s47")
    a(f"s_add_u32 m0, s42, {base}")
    a("s_nop 0")
    for p in range(4):
        a.vm(f"buffer_load_dwordx4 v4, s[12:15], s40 offen offset:{1024*p} lds", ("st", st))
    a("s_add_u32 s40, s40, 8192")
    for p in range(4):
        a(f"s_add_u32 m0, s42, {base + 16384 + 1024*p}")
        a(f"s_add_u32 s44, s41, {8192*p}")
        a.vm(f"buffer_load_dwordx4 v5, {S}, s44 offen lds", ("st", st))
    a(f"s_add_u32 s41, s41, {128*1024}")


def k3():
    a = Asm()
    a("""
    s_cmp_ge_u32 s2, 256
    s_cbranch_scc1 k3_exit
    s_load_dwordx2 s[16:17], s[0:1], 16
    s_load_dwordx2 s[18:19], s[0:1], 56
    s_load_dwordx2 s[20:21], s[0:1], 72
    s_load_dwordx2 s[24:25], s[0:1], 88
    v_and_b32 v1, 63, v0
    v_lshrrev_b32 v4, 6, v0
    v_and_b32 v2, 31, v0
    v_readfirstlane_b32 s32, v4
    v_bfe_u32 v3, v0, 5, 1
    s_and_b32 s33, s2, 7
    s_lshr_b32 s44, s2, 3
    s_and_b32 s34, s44, 7
    s_lshr_b32 s35, s44, 3
    s_lshl_b32 s33, s33, 2
    s_add_u32 s35, s35, s33
    s_and_b32 s36, s32, 3
    s_cmp_ge_u32 s32, 4
    s_cbranch_scc0 k3_comp
    """)
    l = fork(a)
    l(f"""
    s_lshr_b32 s44, s36, 1
    s_lshl_b32 s45, s35, 1
    s_add_u32 s44, s44, s45
    s_mul_i32 s40, s44, {88*1024}
    s_and_b32 s45, s36, 1
    s_lshl_b32 s45, s45, 12
    s_add_u32 s40, s40, s45
    s_add_u32 s40, s40, {OU}
    s_lshl_b32 s41, s36, 15
    s_lshl_b32 s45, s34, 7
    s_add_u32 s41, s41, s45
    s_mov_b32 s47, s41
    s_lshl_b32 s42, s36, 12
    v_lshlrev_b32 v4, 4, v1
    v_lshrrev_b32 v6, 3, v1
    v_and_b32 v7, 7, v1
    v_bfe_u32 v8, v1, 4, 1
    v_lshlrev_b32 v8, 2, v8
    v_xor_b32 v7, v7, v8
    v_lshlrev_b32 v7, 4, v7
    v_lshl_add_u32 v5, v6, 10, v7
    s_waitcnt lgkmcnt(0)
    """)
    srd(l, 12, 24, 25, WS_SIZE)
    srd(l, 8, 16, 17, 512 * 1024)
    srd(l, 28, 18, 19, 896 * 1024)
    for st in range(5): dma(l, st)
    for st in range(NST):
        l.wait(vm=[("st", st)])
        l("s_barrier")
        if st >= 1 and st + 4 < NST: dma(l, st + 4)
    l("s_endpgm")
    c = fork(a)
    c.label("k3_comp")
    c(f"""
    v_bfe_u32 v6, v1, 2, 2
    v_lshl_add_u32 v7, v3, 3, v6
    v_and_b32 v8, 1, v1
    v_bfe_u32 v9, v1, 1, 1
    v_lshl_add_u32 v8, v8, 1, v9
    v_lshlrev_b32 v8, 3, v8
    v_bfe_u32 v9, v1, 4, 1
    v_lshl_add_u32 v8, v9, 5, v8
    s_and_b32 s45, s36, 1
    s_lshl_b32 s46, s45, 6
    v_add_u32 v8, s46, v8
    v_bfe_u32 v9, v1, 3, 1
    v_lshlrev_b32 v9, 6, v9
    v_xor_b32 v8, v8, v9
    v_lshl_add_u32 v10, v7, 7, v8
    v_add_u32 v10, 16384, v10
    s_lshr_b32 s44, s36, 1
    s_lshl_b32 s47, s44, 13
    v_lshlrev_b32 v11, 4, v1
    v_add_u32 v11, s47, v11
    s_lshl_b32 s48, s35, 1
    s_add_u32 s48, s48, s44
    s_lshl_b32 s48, s48, 15
    s_lshl_b32 s49, s34, 7
    s_add_u32 s48, s48, s49
    s_add_u32 s48, s48, s46
    v_lshlrev_b32 v12, 10, v2
    v_lshl_add_u32 v12, v3, 4, v12
    s_waitcnt lgkmcnt(0)
    """)
    srd(c, 4, 20, 21, 2048 * 1024)
    n = 0
    pend = []
    bank = 0
    D = 2
    for st in range(NST):
        s = st % 5
        nb, so = s // 2, (s % 2) * SLOT
        for t in range(4):
            if t == 0:
                c.wait(lds_all=True)
                c("s_barrier")
                if nb != bank:
                    d = ((nb - bank) * 65536) & 0xffffffff
                    c(f"v_add_u32 v10, {d:#x}, v10"); c(f"v_add_u32 v11, {d:#x}, v11")
                    bank = nb
            fb = FB[n % 3]
            m = []
            for e in range(2):
                kk = 2 * t + e
                o = so + kk * 2048
                c.ds(f"ds_read_b64_tr_b16 {vr(fb+8*e,2)}, v10 offset:{o}", n)
                c.ds(f"ds_read_b64_tr_b16 {vr(fb+8*e+2,2)}, v10 offset:{o+512}", n)
                c.ds(f"ds_read_b128 {vr(fb+8*e+4,4)}, v11 offset:{so + kk*1024}", n)
                cc = "0" if (st == 0 and kk == 0) else vr(ACC, 16)
                m.append(f"v_mfma_f32_32x32x16_bf16 {vr(ACC,16)}, {vr(fb+8*e,4)}, {vr(fb+8*e+4,4)}, {cc}")
            pend.append((n, m))
            if len(pend) > D:
                tg, mm = pend.pop(0)
                c.wait(lds=[tg])
                for x in mm: c(x)
            n += 1
    for tg, mm in pend:
        c.wait(lds=[tg])
        for x in mm: c(x)
    c("s_nop 7"); c("s_nop 3")
    for q in range(8): c(f"v_cvt_pk_bf16_f32 v{16+q}, v{ACC+2*q}, v{ACC+2*q+1}")
    c("buffer_store_dwordx4 v[16:19], v12, s[4:7], s48 offen")
    c("buffer_store_dwordx4 v[20:23], v12, s[4:7], s48 offen offset:32")
    c.label("k3_exit")
    c("s_endpgm")
    errs = check_hazards(a.lines + l.lines, "k3/ld") + check_hazards(a.lines + c.lines, "k3/comp")
    return header("k3_kernel") + a.text() + l.text() + c.text(), desc("k3_kernel", 80, 80), errs
```

```python
from common import *

def emit_ln(a, ws, s_fg, s_tt, s_w, vlane, t0, st0, sc=""):
    S = f"s[{ws}:{ws+3}]"
    va, vs = t0, t0 + 1
    z = [t0 + 4, t0 + 8]
    p = [t0 + 12, t0 + 16]
    tmp = t0 + 20
    a(f"""
    s_lshr_b32 s{st0}, s{s_w}, 1
    s_lshl_b32 s{st0+1}, s{s_fg}, 2
    s_add_u32 s{st0}, s{st0}, s{st0+1}
    s_lshl_b32 s{st0}, s{st0}, 17
    s_lshl_b32 s{st0+1}, s{s_tt}, 1
    s_and_b32 s{st0+2}, s{s_w}, 1
    s_add_u32 s{st0+1}, s{st0+1}, s{st0+2}
    s_lshl_b32 s{st0+1}, s{st0+1}, 11
    s_add_u32 s{st0}, s{st0}, s{st0+1}
    s_add_u32 s{st0+1}, s{st0+1}, {ST}
    s_add_u32 s{st0+2}, s{st0}, {Z2}
    s_add_u32 s{st0}, s{st0}, {Z2N}
    v_lshlrev_b32 v{va}, 4, v{vlane}
    """)
    for e in range(2):
        a.vm(f"buffer_load_dwordx4 {vr(p[e],4)}, v{va}, {S}, s{st0+1} offen offset:{1024*e}", ("lnp", e))
    for e in range(2):
        a.vm(f"buffer_load_dwordx4 {vr(z[e],4)}, v{va}, {S}, s{st0+2} offen offset:{1024*e}", ("lnz", e))
    a.wait(vm=[("lnp", 1)])
    for e in range(2):
        a(f"v_add_f32 v{p[e]}, v{p[e]}, v{p[e]+2}")
        a(f"v_add_f32 v{p[e]+1}, v{p[e]+1}, v{p[e]+3}")
    for qp in ("[1,0,3,2]", "[2,3,0,1]"):
        a("s_nop 1")
        for e in range(2):
            a(f"v_add_f32_dpp v{p[e]+2}, v{p[e]}, v{p[e]} quad_perm:{qp} row_mask:0xf bank_mask:0xf")
            a(f"v_add_f32_dpp v{p[e]+3}, v{p[e]+1}, v{p[e]+1} quad_perm:{qp} row_mask:0xf bank_mask:0xf")
        for e in range(2):
            a(f"v_mov_b32 v{p[e]}, v{p[e]+2}")
            a(f"v_mov_b32 v{p[e]+1}, v{p[e]+3}")
    for e in range(2):
        a(f"v_mul_f32 v{p[e]}, {f32(1/896)}, v{p[e]}")
        a(f"v_mul_f32 v{p[e]+1}, {f32(1/896)}, v{p[e]+1}")
    for e in range(2):
        a(f"v_fma_f32 v{p[e]+1}, -v{p[e]}, v{p[e]}, v{p[e]+1}")
    for e in range(2):
        a(f"v_max_f32 v{p[e]+1}, 0, v{p[e]+1}")
    for e in range(2):
        a(f"v_add_f32 v{p[e]+1}, {f32(1e-5)}, v{p[e]+1}")
    for e in range(2):
        a(f"v_rsq_f32 v{p[e]+1}, v{p[e]+1}")
    a("s_nop 0")
    for e in range(2):
        a(f"v_mul_f32_e64 v{p[e]}, -v{p[e]}, v{p[e]+1}")
    for e in range(2):
        a.wait(vm=[("lnz", e)])
        for q in range(4):
            a(f"v_lshlrev_b32 v{tmp+2*q}, 16, v{z[e]+q}")
            a(f"v_and_b32 v{tmp+2*q+1}, 0xffff0000, v{z[e]+q}")
        for q in range(8):
            a(f"v_fma_f32 v{tmp+q}, v{tmp+q}, v{p[e]+1}, v{p[e]}")
        for q in range(4):
            a(f"v_cvt_pk_bf16_f32 v{z[e]+q}, v{tmp+2*q}, v{tmp+2*q+1}")
        a.vm(f"buffer_store_dwordx4 {vr(z[e],4)}, v{va}, {S}, s{st0} offen offset:{1024*e}{sc}", "lnst")

def kln():
    a = Asm()
    a("""
    s_cmp_ge_u32 s2, 224
    s_cbranch_scc1 kln_exit
    s_load_dwordx2 s[24:25], s[0:1], 88
    v_and_b32 v1, 63, v0
    v_lshrrev_b32 v2, 6, v0
    s_and_b32 s33, s2, 31
    v_readfirstlane_b32 s32, v2
    s_lshr_b32 s34, s2, 5
    s_waitcnt lgkmcnt(0)
    """)
    srd(a, 12, 24, 25, WS_SIZE)
    emit_ln(a, 12, 34, 33, 32, 1, 4, 40)
    a.label("kln_exit")
    a("s_endpgm")
    return header("kln_kernel") + a.text(), desc("kln_kernel", 40, 40), check_hazards(a.lines, "kln")
```

```python
import copy, struct, math
from asmlib import Asm, check_hazards

QF = 0x000000
KF = 0x200000
VF = 0x400000
Z1 = 0x600000
Z2 = 0xA00000
Z2N = 0xE00000
ST = 0x1200000
G = 0x1240000
FL = 0x1250000
OU = 0x1400000
WS_SIZE = 268435456
TS = 0x1A00000

LOG2E = 1.4426950408889634
QSCALE = 0.25 * LOG2E
GC1 = -2.0 * math.sqrt(2.0 / math.pi) * LOG2E
GC2 = GC1 * 0.044715


def f32(x):
    return "0x%08x" % struct.unpack("<I", struct.pack("<f", x))[0]


def fork(a):
    b = Asm()
    b.lds_q = list(a.lds_q)
    b.vm_q = list(a.vm_q)
    return b


def vr(base, n, p="v"):
    return f"{p}[{base}:{base + n - 1}]" if n > 1 else f"{p}{base}"


def srd(a, d, lo, hi, size):
    a(f"s_mov_b32 s{d}, s{lo}")
    a(f"s_mov_b32 s{d+1}, s{hi}")
    a(f"s_mov_b32 s{d+2}, {size}")
    a(f"s_mov_b32 s{d+3}, 0x00020000")


def header(name):
    return f""".globl {name}
.p2align 8
.type {name},@function
{name}:
"""


def desc(name, nvgpr, accum, nsgpr=96):
    return f""".p2align 6
.amdhsa_kernel {name}
  .amdhsa_next_free_vgpr {nvgpr}
  .amdhsa_next_free_sgpr {nsgpr}
  .amdhsa_accum_offset {accum}
  .amdhsa_group_segment_fixed_size 0
  .amdhsa_kernarg_size 96
  .amdhsa_user_sgpr_count 2
  .amdhsa_user_sgpr_kernarg_segment_ptr 1
  .amdhsa_system_sgpr_workgroup_id_x 1
.end_amdhsa_kernel
"""

import os
def stamp(a, i):
    if os.environ.get("STAMP"):
        a(f"s_memtime s[{84+2*i}:{85+2*i}]")
```

```python
from common import *

E = os.environ.get
SC = " sc1" if int(E("K1SC", "0")) else ""
SLOT = 32768
NSLOT = 5
D = 2
NB = D + 1
FB = 36
ACC = [64, 80, 96]
TMP = 20
OUT = 28
V_C2, V_SUM, V_SQ = 14, 15, 16
V_X0, V_X1, V_W0, V_W1, V_WQ, V_WS = 2, 3, 4, 5, 60, 61
V_L, V_Z0, V_Z1, V_V = 112, 12, 13, 113
V_N, V_H = 17, 18
V_RP, V_RS = 10, 11
V_T0, V_T1 = 62, 63


def slot_off(stage):
    s = stage % NSLOT
    return s // 2, (s % 2) * SLOT


def dma_list(stage):
    base = (stage % NSLOT) * SLOT
    out = []
    if stage < 8:
        out.append(([f"s_add_u32 s45, s38, {128*stage}", f"s_add_u32 m0, s48, {base}"], f"buffer_load_dwordx4 v{V_X0}, s[4:7], s45 offen lds", []))
        out.append(([f"s_add_u32 m0, s48, {base+1024}", "s_nop 0"], f"buffer_load_dwordx4 v{V_X1}, s[4:7], s45 offen lds", []))
        out.append(([f"s_add_u32 m0, s44, {base+16384}", "s_nop 0"], f"buffer_load_dwordx4 v{V_W0}, s[8:11], s39 offen lds", [f"s_add_u32 s39, s39, {64*3584}"]))
        out.append(([f"s_add_u32 m0, s44, {base+24576}", "s_nop 0"], f"buffer_load_dwordx4 v{V_W1}, s[28:31], s40 offen lds", ["s_add_u32 s40, s40, s43"]))
    elif stage < 10:
        for uu in range(4):
            out.append(([f"s_add_u32 m0, s44, {base+uu*8192}", "s_nop 0"], f"buffer_load_dwordx4 v{V_WQ}, s[64:67], s41 offen lds", [f"s_add_u32 s41, s41, {64*3072}"]))
    elif stage == 10:
        for p in range(4):
            out.append(([f"s_add_u32 m0, s44, {base+p*8192}", "s_nop 0"], f"buffer_load_dwordx4 v{V_WS}, s[8:11], s42 offen lds", [f"s_add_u32 s42, s42, {128*3584}"]))
    return out


def emit_dma(a, item, stage, track=True):
    pre, ld, post = item
    for p in pre: a(p)
    if not pre[-1].startswith("s_nop"): a("s_nop 0")
    if track: a.vm(ld, ("st", stage))
    else: a(ld)
    for p in post: a(p)


def xfrag(s):
    return f"a[{4*s}:{4*s+3}]"


def mfma(acc, A, B, first):
    c = "0" if first else vr(acc, 16)
    return f"v_mfma_f32_32x32x16_bf16 {vr(acc,16)}, {A}, {B}, {c}"


def tr2(dst, addr, off):
    return [f"ds_read_b64_tr_b16 {vr(dst,2)}, v{addr} offset:{off[0]}", f"ds_read_b64_tr_b16 {vr(dst+2,2)}, v{addr} offset:{off[1]}"]


def steps_phase1():
    out = []
    for u in range(8):
        _, so = slot_off(u)
        for j in range(4):
            s = 4 * u + j
            def mk(b, u=u, j=j, s=s, so=so):
                fb = FB + 8 * b
                r = [f"ds_read_b128 {xfrag(s)}, v{6+j} offset:{so}"]
                r += tr2(fb, V_RP, [so + 16384 + (16*j) * 128, so + 16384 + (16*j+4) * 128])
                r += tr2(fb + 4, V_RP, [so + 24576 + (16*j) * 128, so + 24576 + (16*j+4) * 128])
                m = [mfma(ACC[0], vr(fb, 4), xfrag(s), s == 0), mfma(ACC[1], vr(fb+4, 4), xfrag(s), s == 0)]
                return r, m
            out.append((u, j == 0, mk))
    return out


def steps_pair(acc, swap):
    out = []
    for t in range(16):
        def mk(b, t=t):
            fb = FB + 8 * b
            r, m = [], []
            for e in range(2):
                s = 2 * t + e
                o = s * 2048
                r += tr2(fb + 4*e, V_RP, [o, o + 512])
                A, B = vr(fb + 4*e, 4), xfrag(s)
                if swap: A, B = B, A
                m.append(mfma(acc, A, B, s == 0))
            return r, m
        out.append((None, False, mk))
    return out


def steps_single(acc):
    out = []
    for t in range(16):
        def mk(b, t=t):
            fb = FB + 8 * b
            r, m = [], []
            for e in range(2):
                s = 2 * t + e
                o = s * 1024
                r += tr2(fb + 4*e, V_RS, [o, o + 256])
                m.append(mfma(acc, vr(fb + 4*e, 4), xfrag(s), s == 0))
            return r, m
        out.append((None, False, mk))
    return out


class Pipe:
    def __init__(self):
        self.n = 0; self.pend = []; self.dmaq = []; self.bank = 0; self.epi = []
    def clone(self):
        p = Pipe(); p.n = self.n; p.pend = list(self.pend); p.dmaq = list(self.dmaq); p.bank = self.bank; p.epi = list(self.epi)
        return p


def emit_epi(a, P, quota):
    k = 0
    while P.epi and (quota is None or k < quota):
        kind, text, ready = P.epi[0]
        if quota is not None and ready > P.n: break
        P.epi.pop(0)
        if kind == "vm": a.vm(text, "out")
        else: a(text)
        if kind != "s": k += 1


def boundary(a, P, stage):
    a.comment(f"---- stage {stage}")
    while P.dmaq:
        it, st = P.dmaq.pop(0); emit_dma(a, it, st)
    if stage == 7:
        a.comment("single tile (X only), untracked: later counted waits only get stricter")
        a("s_cmp_eq_u32 s35, 0")
        a("s_cbranch_scc0 k1_nos")
        for it in dma_list(10): emit_dma(a, it, 10, False)
        a.label("k1_nos")
    if stage == 8:
        a("s_waitcnt vmcnt(0) lgkmcnt(0)")
        a.vm_q = []; a.lds_q = []
    else:
        a.wait(vm=[("st", stage)], lds_all=True)
    a("s_barrier")
    if stage == 0: stamp(a, 0)
    if stage == 8: stamp(a, 1)
    if stage == 8:
        d = 0x18000 - P.bank * 65536
        a(f"v_add_u32 v{V_RP}, {d & 0xffffffff:#x}, v{V_RP}")
        if int(E("K1W", "1")):
            a.vm(f"buffer_load_dword v{V_T1}, v{V_T0}, s[68:71], s73 offen", "out")
        return
    nb, _ = slot_off(stage)
    if nb != P.bank:
        d = (nb - P.bank) * 65536
        for r in [6, 7, 8, 9, V_RP]:
            a(f"v_add_u32 v{r}, {d & 0xffffffff:#x}, v{r}")
        P.bank = nb
    if stage == 1:
        a("s_mov_b64 exec, 1")
        a.vm(f"buffer_store_dword v{V_SUM}, v{V_SUM}, s[12:15], s72 offen", "out")
        a("s_mov_b64 exec, -1")
    if stage >= 1 and stage + 4 < 10:
        P.dmaq = [(it, stage + 4) for it in dma_list(stage + 4)]


def run_steps(a, P, steps, quota):
    for (stage, first, mk) in steps:
        if first: boundary(a, P, stage)
        r, m = mk(P.n % NB)
        tag = ("rd", P.n)
        for x in r: a.ds(x, tag)
        P.pend.append((tag, m))
        if len(P.pend) > D:
            t, mm = P.pend.pop(0)
            a.wait(lds=[t])
            if quota and SPLIT:
                a(mm[0]); emit_epi(a, P, quota // 2); a(mm[1]);
            else:
                for x in mm: a(x)
        if P.dmaq:
            it, st = P.dmaq.pop(0); emit_dma(a, it, st)
        P.n += 1
        emit_epi(a, P, (quota - quota // 2) if (quota and SPLIT) else quota)

SPLIT = int(E("K1SPLIT", "1"))


def drain(a, P, quota=None):
    while P.pend:
        t, mm = P.pend.pop(0)
        a.wait(lds=[t])
        for x in mm: a(x)
        P.n += 1
        if quota: emit_epi(a, P, quota)


def epi_cvt_store(acc, scale, stores, ready):
    e = []
    for g in range(2):
        o = OUT + 4 * g
        if scale:
            for r in range(8): e.append(("v", f"v_mul_f32 v{acc+8*g+r}, s52, v{acc+8*g+r}", ready))
        for q in range(4):
            e.append(("v", f"v_cvt_pk_bf16_f32 v{o+q}, v{acc+8*g+2*q}, v{acc+8*g+2*q+1}", ready))
        pre, st = stores[g]
        for p in pre: e.append(("s", p, ready))
        e.append(("vm", st.format(d=vr(o, 4)), ready))
    return e


def epi_gelu(acc, soff, ready, stats):
    e = []
    for g in range(2):
        o = OUT + 4 * g
        for half in range(2):
            xs = [acc + 8 * g + 4 * half + i for i in range(4)]
            ts = [TMP + 4 * half + i for i in range(4)]
            for x, t in zip(xs, ts): e.append(f"v_mul_f32 v{t}, v{x}, v{x}")
            for x, t in zip(xs, ts): e.append(f"v_fmaak_f32 v{t}, v{t}, v{V_C2}, {f32(GC1)}")
            for x, t in zip(xs, ts): e.append(f"v_mul_f32 v{t}, v{t}, v{x}")
            for x, t in zip(xs, ts): e.append(f"v_exp_f32 v{t}, v{t}")
            for x, t in zip(xs, ts): e.append(f"v_add_f32 v{t}, 1.0, v{t}")
            for x, t in zip(xs, ts): e.append(f"v_rcp_f32 v{t}, v{t}")
            for x, t in zip(xs, ts): e.append(f"v_mul_f32 v{t}, v{t}, v{x}")
            if stats:
                for i, t in enumerate(ts):
                    e.append(f"v_add_f32 v{V_SUM}, v{V_SUM}, v{t}")
                    e.append(f"v_fmac_f32 v{V_SQ}, v{t}, v{t}")
            e.append(f"v_cvt_pk_bf16_f32 v{o+2*half}, v{ts[0]}, v{ts[1]}")
            e.append(f"v_cvt_pk_bf16_f32 v{o+2*half+1}, v{ts[2]}, v{ts[3]}")
        e.append(("vm", f"buffer_store_dwordx4 {vr(o,4)}, v{V_Z0+g}, s[12:15], s{soff} offen{SC}"))
    return [(x[0], x[1], ready) if isinstance(x, tuple) else ("v", x, ready) for x in e]


def uses(epi, acc):
    names = {f"v{acc+i}" for i in range(16)}
    return any(names & set(t.replace(",", " ").split()) for (_, t, _) in epi)


def k1():
    a = Asm()
    a("""
    s_cmp_ge_u32 s2, 256
    s_cbranch_scc1 k1_exit
    s_load_dwordx4 s[16:19], s[0:1], 0
    s_load_dwordx4 s[20:23], s[0:1], 32
    s_load_dwordx2 s[24:25], s[0:1], 88
    v_and_b32 v1, 63, v0
    v_lshrrev_b32 v17, 6, v0
    s_and_b32 s45, s2, 7
    v_readfirstlane_b32 s32, v17
    s_lshr_b32 s46, s2, 3
    s_and_b32 s33, s45, 1
    s_lshl_b32 s33, s33, 3
    s_and_b32 s37, s46, 7
    s_add_u32 s33, s33, s37
    s_lshr_b32 s34, s46, 3
    s_lshr_b32 s35, s34, 1
    s_and_b32 s36, s45, 6
    s_and_b32 s47, s34, 1
    s_add_u32 s36, s36, s47
    """)
    a("""
    s_lshl_b32 s44, s32, 10
    s_lshl_b32 s48, s32, 11
    s_and_b32 s50, s32, 3
    s_lshl_b32 s47, s33, 2
    s_add_u32 s50, s50, s47
    s_lshr_b32 s51, s32, 2
    s_lshl_b32 s38, s33, 17
    s_lshl_b32 s47, s32, 14
    s_add_u32 s38, s38, s47
    """)
    a(f"""
    v_lshrrev_b32 v17, 3, v1
    v_and_b32 v18, 7, v1
    v_lshrrev_b32 v19, 4, v1
    v_xor_b32 v{V_X0}, v18, v19
    v_lshlrev_b32 v{V_X0}, 4, v{V_X0}
    v_lshl_add_u32 v{V_X0}, v17, 10, v{V_X0}
    v_xor_b32 v{V_X1}, 64, v{V_X0}
    v_add_u32 v{V_X1}, 0x2000, v{V_X1}
    """)
    a(f"""
    v_and_b32 v19, 1, v19
    v_lshlrev_b32 v19, 2, v19
    v_xor_b32 v19, v18, v19
    v_lshlrev_b32 v19, 4, v19
    s_movk_i32 s47, 3584
    v_mad_u32_u24 v{V_W0}, v17, s47, v19
    s_movk_i32 s49, 3072
    v_mad_u32_u24 v{V_WQ}, v17, s49, v19
    s_mul_i32 s55, s32, {8*3584}
    s_mul_i32 s56, s32, {8*3072}
    s_lshl_b32 s57, s36, 7
    s_add_u32 s41, s56, s57
    s_cmp_eq_u32 s35, 0
    s_cbranch_scc0 k1_sy0
    """)
    a(f"""
    s_mov_b32 s58, s57
    s_add_u32 s39, s55, s57
    s_mov_b32 s40, s41
    s_add_u32 s41, s41, 2048
    s_mov_b32 s43, {64*3072}
    v_mov_b32 v{V_W1}, v{V_WQ}
    s_waitcnt lgkmcnt(0)
    """)
    srd(a, 28, 18, 19, 512 * 3072)
    a("s_branch k1_sy1")
    a.label("k1_sy0")
    a(f"""
    s_lshl_b32 s58, s36, 8
    s_add_u32 s58, s58, {14*128}
    s_cmp_eq_u32 s36, 7
    s_cselect_b32 s58, {12*128}, s58
    s_add_u32 s39, s55, s58
    s_add_u32 s40, s39, 128
    s_add_u32 s41, s41, 1024
    s_mov_b32 s43, {64*3584}
    v_mov_b32 v{V_W1}, v{V_W0}
    s_waitcnt lgkmcnt(0)
    """)
    srd(a, 28, 20, 21, 512 * 3584)
    a.label("k1_sy1")
    srd(a, 4, 16, 17, 2097152)
    srd(a, 8, 20, 21, 512 * 3584)
    srd(a, 64, 18, 19, 512 * 3072)
    P = Pipe()
    for it in dma_list(0): emit_dma(a, it, 0)
    TOUCH = int(E("K1T", "1"))
    if TOUCH:
        a.comment("touch: waves 0-3 x lines (rows 32j.. of the XCD half, lines 2w,2w+1); waves 4-7 own weight columns, rows = r8 mod 8")
        a(f"""
        s_cmp_ge_u32 s32, 4
        s_cbranch_scc1 k1_tw
        s_and_b32 s47, s2, 1
        s_lshl_b32 s47, s47, 5
        s_add_u32 s47, s47, s46
        s_lshl_b32 s47, s47, 15
        s_lshl_b32 s49, s32, 8
        s_add_u32 s47, s47, s49
        v_and_b32 v{V_T0}, 31, v1
        v_lshlrev_b32 v{V_T0}, 10, v{V_T0}
        v_lshrrev_b32 v19, 5, v1
        v_lshl_add_u32 v{V_T0}, v19, 7, v{V_T0}
        buffer_load_dword v{V_T1}, v{V_T0}, s[4:7], s47 offen
        s_branch k1_td
        """)
        a.label("k1_tw")
        a(f"""
        v_lshl_add_u32 v19, v1, 3, s37
        s_cmp_eq_u32 s32, 6
        s_cbranch_scc1 k1_tq
        s_lshl_b32 s47, s35, 7
        s_add_u32 s47, s47, s58
        s_lshl_b32 s49, s36, 6
        s_add_u32 s49, s49, 1024
        s_cmp_eq_u32 s32, 7
        s_cselect_b32 s47, s49, s47
        s_cmp_eq_u32 s32, 4
        s_cselect_b32 s47, s58, s47
        s_sub_u32 s49, s32, s35
        s_cmp_eq_u32 s49, 5
        s_cbranch_scc1 k1_tq2
        v_mul_u32_u24 v{V_T0}, 3584, v19
        buffer_load_dword v{V_T1}, v{V_T0}, s[8:11], s47 offen
        s_branch k1_td
        """)
        a.label("k1_tq")
        a("s_sub_u32 s47, s41, s56")
        a.label("k1_tq2")
        a(f"""
        v_mul_u32_u24 v{V_T0}, 3072, v19
        buffer_load_dword v{V_T1}, v{V_T0}, s[64:67], s47 offen
        """)
        a.label("k1_td")
        a.vm_q.append("touch")
    for st in range(1, 5):
        for it in dma_list(st): emit_dma(a, it, st)
    srd(a, 12, 24, 25, WS_SIZE)
    srd(a, 68, 22, 23, 2048 * 4096)
    a(f"""
    s_lshl_b32 s42, s55, 1
    s_lshl_b32 s47, s36, 6
    s_add_u32 s42, s42, s47
    s_add_u32 s42, s42, 1024
    v_lshrrev_b32 v19, 2, v1
    v_mul_u32_u24 v{V_WS}, 3584, v19
    v_and_b32 v19, 3, v1
    v_lshl_add_u32 v{V_WS}, v19, 4, v{V_WS}
    """)
    a(f"""
    v_and_b32 v{V_N}, 31, v1
    v_lshrrev_b32 v{V_H}, 5, v1
    v_bfe_u32 v19, v1, 1, 3
    v_xor_b32 v19, v19, v{V_H}
    v_lshlrev_b32 v19, 4, v19
    v_lshl_add_u32 v6, v{V_N}, 7, v19
    s_and_b32 s47, s32, 3
    s_lshl_b32 s47, s47, 12
    v_add_u32 v6, s47, v6
    v_xor_b32 v7, 32, v6
    v_xor_b32 v8, 64, v6
    v_xor_b32 v9, 96, v6
    """)
    a(f"""
    v_bfe_u32 v20, v1, 2, 2
    v_lshl_add_u32 v21, v{V_H}, 3, v20
    v_and_b32 v22, 1, v1
    v_bfe_u32 v23, v1, 1, 1
    v_lshl_add_u32 v22, v22, 1, v23
    v_lshlrev_b32 v22, 3, v22
    v_bfe_u32 v23, v1, 4, 1
    v_lshl_add_u32 v22, v23, 5, v22
    v_lshl_add_u32 v{V_RS}, v21, 6, v22
    s_lshl_b32 s47, s51, 6
    v_add_u32 v22, s47, v22
    v_bfe_u32 v23, v1, 3, 1
    v_lshlrev_b32 v23, 6, v23
    v_xor_b32 v22, v22, v23
    v_lshl_add_u32 v{V_RP}, v21, 7, v22
    v_lshlrev_b32 v{V_L}, 4, v1
    v_mov_b32 v{V_C2}, {f32(GC2)}
    v_mov_b32 v{V_SUM}, 0
    v_mov_b32 v{V_SQ}, 0
    s_mov_b32 s52, {f32(QSCALE)}
    """)
    a(f"""
    s_lshl_b32 s60, s36, 2
    s_lshl_b32 s47, s51, 1
    s_add_u32 s60, s60, s47
    s_lshl_b32 s60, s60, 16
    s_lshl_b32 s47, s50, 10
    s_add_u32 s60, s60, s47
    s_add_u32 s62, s60, {VF}
    s_lshl_b32 s47, s35, 21
    s_add_u32 s60, s60, s47
    v_bfe_u32 v{V_V}, v1, 4, 1
    v_lshlrev_b32 v{V_V}, 16, v{V_V}
    v_lshl_add_u32 v{V_V}, v{V_H}, 8, v{V_V}
    v_and_b32 v19, 15, v1
    v_lshl_add_u32 v{V_V}, v19, 4, v{V_V}
    s_lshr_b32 s57, s58, 6
    s_add_u32 s57, s57, s51
    s_lshl_b32 s72, s2, 7
    s_add_u32 s72, s72, {FL}
    s_and_b32 s73, s2, 7
    s_lshl_b32 s73, s73, 5
    s_add_u32 s73, s73, s46
    s_lshl_b32 s73, s73, 3
    s_add_u32 s73, s73, s32
    s_lshl_b32 s73, s73, 12
    s_cmp_ge_u32 s57, 28
    s_cbranch_scc1 k1_sz2
    s_mul_i32 s47, s50, {56*1024}
    s_add_u32 s47, s47, {Z1}
    s_lshl_b32 s61, s57, 11
    s_add_u32 s61, s61, s47
    s_add_u32 s63, s61, 4096
    s_add_u32 s59, s36, 16
    s_lshl_b32 s59, s59, 11
    s_add_u32 s59, s59, s47
    v_mov_b32 v{V_Z0}, v{V_L}
    v_add_u32 v{V_Z1}, 1024, v{V_L}
    s_mov_b32 s74, 0
    s_branch k1_main
    """)
    a.label("k1_sz2")
    a(f"""
    s_lshl_b32 s47, s50, 11
    s_add_u32 s47, s47, {Z2 - 28*131072}
    s_lshl_b32 s61, s57, 17
    s_add_u32 s61, s61, s47
    s_add_u32 s63, s61, 262144
    v_lshlrev_b32 v{V_Z0}, 4, v{V_H}
    v_lshl_add_u32 v{V_Z0}, v{V_N}, 6, v{V_Z0}
    v_add_u32 v{V_Z1}, 32, v{V_Z0}
    s_mov_b32 s74, 1.0
    """)
    a.label("k1_main")
    assert KF - QF == 1 << 21 and QF == 0
    run_steps(a, P, steps_phase1(), None)
    a(f"v_lshlrev_b32 v{V_T0}, 7, v{V_N}")
    boundary(a, P, 8)
    rdy = P.n + D + 2
    st_qk = [([], f"buffer_store_dwordx4 {{d}}, v{V_L}, s[12:15], s60 offen{SC}"),
             (["s_add_u32 s60, s60, 0x10000"], f"buffer_store_dwordx4 {{d}}, v{V_L}, s[12:15], s60 offen{SC}")]
    st_v = [([], f"buffer_store_dwordx4 {{d}}, v{V_V}, s[12:15], s62 offen{SC}"), ([], f"buffer_store_dwordx4 {{d}}, v{V_V}, s[12:15], s62 offen offset:512{SC}")]
    a("s_cmp_eq_u32 s35, 0")
    a("s_cbranch_scc0 k1_y")
    a("s_cmp_eq_u32 s51, 0")
    a("s_cbranch_scc0 k1_xb")
    def tail(q, Q, acc, st):
        drain(q, Q, 10)
        emit_epi(q, Q, None)
        q("s_nop 7"); q("s_nop 3")
        Q.epi = epi_cvt_store(acc, False, st, 0)
        emit_epi(q, Q, None)
    QA, QB, QY = int(E("QA", "10")), int(E("QB", "12")), int(E("QY", "22"))
    xa = fork(a); XA = P.clone()
    if int(E("XAPRIO", "1")): xa("s_setprio 1")
    XA.epi = epi_cvt_store(ACC[1], True, st_qk, rdy) + epi_gelu(ACC[0], 61, rdy, False)
    run_steps(xa, XA, steps_single(ACC[2]), QA)
    assert not uses(XA.epi, ACC[1])
    XA.epi += epi_gelu(ACC[2], 59, XA.n + D + 2, False)
    run_steps(xa, XA, steps_pair(ACC[1], True), QA)
    tail(xa, XA, ACC[1], st_v)
    xa("s_endpgm")
    xb = fork(a); XB = P.clone()
    xb.label("k1_xb")
    XB.epi = epi_cvt_store(ACC[1], True, st_qk, rdy) + epi_gelu(ACC[0], 61, rdy, False)
    run_steps(xb, XB, steps_pair(ACC[2], True), QB)
    tail(xb, XB, ACC[2], st_v)
    xb("s_endpgm")
    y = fork(a); Y = P.clone()
    y.label("k1_y")
    Y.epi = epi_gelu(ACC[0], 61, rdy, True) + epi_gelu(ACC[1], 63, rdy, True)
    run_steps(y, Y, steps_pair(ACC[2], False), QY)
    tail(y, Y, ACC[2], st_qk)
    y(f"""
    v_permlane32_swap_b32 v{V_SUM}, v{V_SQ}
    v_lshlrev_b32 v21, 7, v{V_N}
    v_lshl_add_u32 v21, v{V_H}, 2, v21
    v_add_f32 v20, v{V_SUM}, v{V_SQ}
    s_lshl_b32 s47, s36, 1
    s_add_u32 s47, s47, s51
    v_mul_f32 v20, s74, v20
    s_lshl_b32 s47, s47, 3
    s_lshl_b32 s46, s50, 12
    s_add_u32 s47, s47, s46
    s_add_u32 s47, s47, {ST}
    buffer_store_dword v20, v21, s[12:15], s47 offen{SC}
    """)
    y.label("k1_exit")
    y("s_endpgm")
    errs = []
    for n, l in {"xa": xa, "xb": xb, "y": y}.items(): errs += check_hazards(a.lines + l.lines, "k1/" + n)
    text = header("k1_kernel") + a.text() + xa.text() + xb.text() + y.text()
    return text, desc("k1_kernel", 256, 128), errs
```

```python
from common import *
from kln import emit_ln

K2_GRID = 512
K2_LDS = 73728
E = os.environ.get
FUSELN = int(E("FUSELN", "1"))
APRIO = int(E("APRIO", "0"))
GPRIO = int(E("GPRIO", "0"))
LPRIO = int(E("LPRIO", "2"))
PDIST = int(E("PDIST", "8"))
ZSC = " sc1" if int(E("ZSC", "1")) else ""

QFR = [4, 8]
KB = [12, 16]
VB = [20, 28]
PB = 36
SB = [48, 64]
OB = [80, 96]
A_K, A_V, A_DMA, V_G = 44, 45, 46, 47
T0, T1 = 112, 113
STAND = "-4.0"
ATV = E("ATV", "")


def mf(d, A, B, C):
    return f"v_mfma_f32_32x32x16_bf16 {vr(d,16)}, {vr(A,4)}, {vr(B,4)}, {C}"


def softmax_pv2(a, S, V, O):
    for r in range(8): a(f"v_exp_f32 v{S+r}, v{S+r}")
    for q in range(4): a(f"v_cvt_pk_bf16_f32 v{PB+q}, v{S+2*q}, v{S+2*q+1}")
    a(f"v_exp_f32 v{S+8}, v{S+8}")
    a(f"v_exp_f32 v{S+9}, v{S+9}")
    a(mf(O, V, PB, vr(O, 16)))
    for r in range(10, 16): a(f"v_exp_f32 v{S+r}, v{S+r}")
    for q in range(4): a(f"v_cvt_pk_bf16_f32 v{PB+4+q}, v{S+8+2*q}, v{S+8+2*q+1}")
    a("s_nop 1")
    a(mf(O, V + 4, PB + 4, vr(O, 16)))


def rdK(a, kb):
    a.ds(f"ds_read_b128 {vr(KB[kb%2],4)}, v{A_K} offset:{(kb%8)*1024}", ("k", kb % 8))


def rdV(a, kb):
    a("s_mov_b64 exec, s[36:37]")
    a.ds(f"ds_read_b128 {vr(VB[kb%2],4)}, v{A_V} offset:{(kb%8)*1024}", ("v", kb % 8))
    a.ds(f"ds_read_b128 {vr(VB[kb%2]+4,4)}, v{A_V} offset:{(kb%8)*1024+512}", ("v", kb % 8))
    a("s_mov_b64 exec, -1")


def attn_dma(a, tag):
    a("s_mov_b32 m0, s42")
    a("s_nop 0")
    a.vm(f"buffer_load_dwordx4 v{A_DMA}, s[12:15], s40 offen lds", tag)
    a.vm(f"buffer_load_dwordx4 v{A_DMA}, s[12:15], s40 offen offset:1024 lds", tag)
    a("s_add_u32 m0, s42, 16384")
    a("s_add_u32 s40, s40, 16384")
    a.vm(f"buffer_load_dwordx4 v{A_DMA}, s[12:15], s41 offen lds", tag)
    a.vm(f"buffer_load_dwordx4 v{A_DMA}, s[12:15], s41 offen offset:1024 lds", tag)
    a("s_add_u32 s41, s41, 16384")
    a("s_xor_b32 s42, s42, 32768")


def attn_unit(a, u):
    kb, qt = u >> 1, u & 1
    X, Y = SB[u % 2], SB[(u + 1) % 2]
    kp, kn = (u - 1) >> 1, (u + 1) >> 1
    e = lambda i: a(f"v_exp_f32 v{X+i}, v{X+i}")
    if "e" in ATV: e = lambda i: a(f"v_exp_f32 v{T0}, v{T1}")
    c = lambda j: a(f"v_cvt_pk_bf16_f32 v{PB+j}, v{X+2*j}, v{X+2*j+1}")
    if "c" in ATV: c = lambda j: a(f"v_cvt_pk_bf16_f32 v{T0}, v{T1}, v{T1}")
    mf = globals()["mf"]
    if "p" in ATV or "s" in ATV:
        def mf(d, A, B, C):
            if ("p" in ATV and C != STAND) or ("s" in ATV and C == STAND): return f"v_max_f32 v{T0}, v{T1}, v{T1}\nv_max_f32 v{T0}, v{T1}, v{T1}"
            return globals()["mf"](d, A, B, C)
    e(0); e(1)
    a(mf(OB[1 - qt], VB[kp % 2] + 4, PB + 4, vr(OB[1 - qt], 16)))
    e(2)
    if u == 14:
        a(f"v_xor_b32 v{A_K}, 0x8000, v{A_K}")
        a("s_waitcnt vmcnt(0) lgkmcnt(0)")
        a.lds_q = []
        a("s_barrier")
    if qt == 0: rdK(a, kb + 1)
    else: rdV(a, kb + 1)
    e(3); c(0); e(4)
    if u == 14:
        a("s_cmp_lt_u32 s43, 2")
        a("s_cbranch_scc0 k2_anodma")
        attn_dma(a, "cx")
        a.label("k2_anodma")
        a(f"v_xor_b32 v{A_V}, 0x8000, v{A_V}")
    e(5); c(1); e(6)
    a.wait(lds=[("k", kn % 8)])
    e(7)
    a(mf(Y, KB[kn % 2], QFR[1 - qt], STAND))
    c(2); c(3); e(8); e(9); e(10)
    a.wait(lds=[("v", kb % 8)])
    e(11); c(4)
    a(mf(OB[qt], VB[kb % 2], PB, vr(OB[qt], 16)))
    e(12); e(13); c(5); e(14); e(15); c(6); c(7)


def attention(a):
    a(f"""
    s_lshr_b32 s35, s34, 3
    s_lshl_b32 s44, s33, 2
    s_add_u32 s35, s35, s44
    s_lshl_b32 s39, s35, 16
    s_lshl_b32 s42, s32, 11
    s_add_u32 s40, s39, s42
    s_add_u32 s41, s40, {VF}
    s_add_u32 s40, s40, {KF}
    v_lshlrev_b32 v{A_DMA}, 4, v1
    """)
    attn_dma(a, "c0")
    a(f"""
    s_and_b32 s38, s34, 7
    s_lshl_b32 s38, s38, 2
    s_and_b32 s44, s32, 3
    s_add_u32 s38, s38, s44
    s_lshl_b32 s38, s38, 1
    s_lshl_b32 s44, s38, 10
    s_add_u32 s44, s44, s39
    s_add_u32 s44, s44, {QF}
    s_lshr_b32 s48, s32, 2
    s_add_u32 s38, s38, s48
    """)
    a.vm(f"buffer_load_dwordx4 {vr(QFR[0],4)}, v{A_DMA}, s[12:15], s44 offen", "c0")
    a.vm(f"buffer_load_dwordx4 {vr(QFR[1],4)}, v{A_DMA}, s[12:15], s44 offen offset:1024", "c0")
    attn_dma(a, "c1")
    a(f"""
    s_mov_b32 s36, 0x0000ffff
    s_mov_b32 s37, 0x0000ffff
    s_lshl_b32 s44, s48, 13
    v_add_u32 v{A_K}, s44, v{A_DMA}
    v_and_b32 v{T1}, 15, v2
    v_lshlrev_b32 v{T1}, 4, v{T1}
    v_lshl_add_u32 v{A_V}, v3, 8, v{T1}
    s_add_u32 s44, s44, 16384
    v_add_u32 v{A_V}, s44, v{A_V}
    """)
    for r in range(16): a(f"v_mov_b32 v{VB[0]+r}, 0")
    a("s_mov_b32 exec_lo, 0x00110000"); a("s_mov_b32 exec_hi, 0x00110000")
    for r in range(16): a(f"v_mov_b32 v{VB[0]+r}, 0x3f803f80")
    a("s_mov_b64 exec, -1")
    if APRIO: a(f"s_setprio {APRIO}")
    for r in range(32): a(f"v_mov_b32 v{OB[0]+r}, 0")
    for r in range(8): a(f"v_mov_b32 v{PB+r}, 0")
    a("s_mov_b32 s43, 0")
    a.wait(vm=["c0"])
    a("s_barrier")
    stamp(a, 0)
    rdK(a, 0); rdV(a, 0)
    a.wait(lds=[("k", 0)])
    a(mf(SB[0], KB[0], QFR[0], STAND))
    a("s_nop 7"); a("s_nop 3")
    q0 = list(a.lds_q)
    a.raw(".p2align 3")
    a.label("k2_aloop")
    for u in range(16): attn_unit(a, u)
    assert a.lds_q == q0, (a.lds_q, q0)
    a("s_add_u32 s43, s43, 1")
    a("s_cmp_lt_u32 s43, 4")
    a("s_cbranch_scc1 k2_aloop")
    stamp(a, 1)
    a(mf(OB[1], VB[1] + 4, PB + 4, vr(OB[1], 16)))
    a(f"""
    s_and_b32 s44, s32, 3
    s_lshl_b32 s44, s44, 1
    s_add_u32 s44, s44, s48
    s_mul_i32 s45, s44, 2304
    s_xor_b32 s44, s44, 1
    s_mul_i32 s44, s44, 2304
    v_add_u32 v{A_K}, s45, v{A_DMA}
    v_add_u32 v{T0}, s44, v{A_DMA}
    v_lshlrev_b32 v{T1}, 2, v1
    v_add_u32 v{PB}, s45, v{T1}
    v_add_u32 v{T1}, s44, v{T1}
    s_waitcnt lgkmcnt(0)
    s_barrier
    s_cmp_eq_u32 s48, 0
    s_cbranch_scc1 k2_ax0
    """)
    a.lds_q = []
    O = OB[0]
    a(f"ds_write_b128 v{A_K}, {vr(OB[0],4)}")
    a(f"ds_write_b128 v{A_K}, {vr(OB[0]+4,4)} offset:1024")
    a(f"ds_write_b32 v{PB}, v{OB[0]+8} offset:2048")
    a("s_nop 1")
    for r in range(9): a(f"v_mov_b32 v{O+r}, v{OB[1]+r}")
    for r in range(4): a(f"v_mov_b32 v{QFR[0]+r}, v{QFR[1]+r}")
    a("s_branch k2_ax1")
    a.label("k2_ax0")
    a(f"ds_write_b128 v{A_K}, {vr(OB[1],4)}")
    a(f"ds_write_b128 v{A_K}, {vr(OB[1]+4,4)} offset:1024")
    a(f"ds_write_b32 v{PB}, v{OB[1]+8} offset:2048")
    a.label("k2_ax1")
    a(f"""
    s_waitcnt lgkmcnt(0)
    s_barrier
    ds_read_b128 {vr(SB[0],4)}, v{T0}
    ds_read_b128 {vr(SB[0]+4,4)}, v{T0} offset:1024
    ds_read_b32 v{SB[0]+8}, v{T1} offset:2048
    s_waitcnt lgkmcnt(0)
    """)
    for r in range(9): a(f"v_add_f32 v{O+r}, v{O+r}, v{SB[0]+r}")
    a(f"v_add_f32_e64 v{T0}, |v{O}|, |v{O+1}|")
    for r in range(2, 8): a(f"v_add_f32_e64 v{T0}, v{T0}, |v{O+r}|")
    a(f"""
    v_cmp_gt_f32 vcc, 0x7f800000, v{T0}
    s_mov_b64 s[46:47], vcc
    v_cmp_lt_f32 vcc, {f32(2.0**-40)}, v{O+8}
    s_and_b64 s[46:47], s[46:47], vcc
    v_cmp_gt_f32 vcc, {f32(2.0**40)}, v{O+8}
    s_and_b64 s[46:47], s[46:47], vcc
    s_cmp_eq_u64 s[46:47], -1
    s_cbranch_scc0 {'k2_aepi' if ATV else 'k2_afall'}
    """)
    a.label("k2_aepi")
    a(f"v_rcp_f32 v{T0}, v{O+8}")
    a(f"s_mul_i32 s44, s38, {88*1024}")
    a(f"s_lshl_b32 s45, s35, 10")
    for r in range(8): a(f"v_mul_f32 v{O+r}, v{O+r}, v{T0}")
    a(f"s_add_u32 s44, s44, s45")
    a(f"s_add_u32 s44, s44, {OU}")
    for q in range(4): a(f"v_cvt_pk_bf16_f32 v{PB+q}, v{O+2*q}, v{O+2*q+1}")
    a(f"buffer_store_dwordx4 {vr(PB,4)}, v{A_DMA}, s[12:15], s44 offen")
    a("s_endpgm")
    CB = SB[1]
    a.label("k2_afall")
    a(f"""
    s_add_u32 s40, s39, {KF}
    s_add_u32 s41, s39, {VF}
    s_mov_b32 s43, 0
    v_mov_b32 v{T0}, 0xff800000
    v_and_b32 v{A_V}, 0x1ff, v{A_V}
    """)
    a.label("k2_af1")
    a(f"""
    buffer_load_dwordx4 {vr(KB[0],4)}, v{A_DMA}, s[12:15], s40 offen
    s_add_u32 s40, s40, 1024
    s_waitcnt vmcnt(0)
    v_mfma_f32_32x32x16_bf16 {vr(SB[0],16)}, {vr(KB[0],4)}, {vr(QFR[0],4)}, 0
    s_nop 7
    s_nop 3
    """)
    for r in range(0, 16, 2): a(f"v_max3_f32 v{T0}, v{T0}, v{SB[0]+r}, v{SB[0]+r+1}")
    a(f"""
    s_add_u32 s43, s43, 1
    s_cmp_lt_u32 s43, 64
    s_cbranch_scc1 k2_af1
    v_mov_b32 v{T1}, v{T0}
    s_nop 1
    v_permlane32_swap_b32 v{T0}, v{T1}
    s_nop 1
    v_max_f32 v{T0}, v{T0}, v{T1}
    """)
    for r in range(16): a(f"v_sub_f32 v{CB+r}, 0, v{T0}")
    for r in range(16): a(f"v_mov_b32 v{O+r}, 0")
    a(f"s_add_u32 s40, s39, {KF}")
    a("s_mov_b32 s43, 0")
    a.label("k2_af2")
    a(f"""
    buffer_load_dwordx4 {vr(KB[0],4)}, v{A_DMA}, s[12:15], s40 offen
    s_mov_b64 exec, s[36:37]
    buffer_load_dwordx4 {vr(VB[0],4)}, v{A_V}, s[12:15], s41 offen
    buffer_load_dwordx4 {vr(VB[0]+4,4)}, v{A_V}, s[12:15], s41 offen offset:512
    s_mov_b64 exec, -1
    s_add_u32 s40, s40, 1024
    s_add_u32 s41, s41, 1024
    s_waitcnt vmcnt(0)
    v_mfma_f32_32x32x16_bf16 {vr(SB[0],16)}, {vr(KB[0],4)}, {vr(QFR[0],4)}, {vr(CB,16)}
    s_nop 7
    s_nop 3
    """)
    softmax_pv2(a, SB[0], VB[0], O)
    a("""
    s_add_u32 s43, s43, 1
    s_cmp_lt_u32 s43, 64
    s_nop 7
    s_nop 3
    s_cbranch_scc1 k2_af2
    s_branch k2_aepi
    """)


GST = 24576
GPACE = [x for x in E("GPACE", "").split(";") if x]
NSTG = 32
G_ACC = [64, 80]
G_FB = [16, 40]
G_Z1 = 96
G_AZ, G_AW = 4, 5
G_DZ, G_B, G_G = 9, 10, 12


def gemm_reads(a, slot, half, tag):
    fb = G_FB[half]
    for e in range(2):
        j = 2 * half + e
        o = slot * GST + 16 * j * 64
        f = fb + 12 * e
        a.ds(f"ds_read_b64_tr_b16 {vr(f,2)}, v{G_AZ} offset:{o}", tag)
        a.ds(f"ds_read_b64_tr_b16 {vr(f+2,2)}, v{G_AZ} offset:{o+256}", tag)
        a.ds(f"ds_read_b128 {vr(f+4,4)}, v{G_AW+j} offset:{slot*GST}", tag)
        a.ds(f"ds_read_b128 {vr(f+8,4)}, v{G_AW+j} offset:{slot*GST+4096}", tag)


def gemm_mfma(a, half):
    fb = G_FB[half]
    for e in range(2):
        f = fb + 12 * e
        for t in range(2):
            a(mf(G_ACC[t], f, f + 4 + 4 * t, vr(G_ACC[t], 16)))
            for x in GPACE: a(x)


def gemm_stage(a, slot):
    a("s_waitcnt lgkmcnt(0)")
    a.lds_q = []
    a("s_barrier")
    gemm_reads(a, slot, 0, "h0")
    gemm_mfma(a, 1)
    gemm_reads(a, slot, 1, "h1")
    a.wait(lds=["h0"])
    gemm_mfma(a, 0)


def gemm_compute(a):
    a(f"""
    v_bfe_u32 v13, v1, 2, 2
    v_lshl_add_u32 v13, v3, 3, v13
    v_and_b32 v14, 1, v1
    v_bfe_u32 v15, v1, 1, 1
    v_lshl_add_u32 v14, v14, 1, v15
    v_lshlrev_b32 v14, 3, v14
    v_bfe_u32 v15, v1, 4, 1
    v_lshl_add_u32 v14, v15, 5, v14
    v_lshl_add_u32 v{G_AZ}, v13, 6, v14
    s_lshl_b32 s45, s32, 12
    v_add_u32 v{G_AZ}, s45, v{G_AZ}
    v_bfe_u32 v13, v1, 1, 3
    v_xor_b32 v13, v13, v3
    v_lshlrev_b32 v13, 4, v13
    v_lshl_add_u32 v{G_AW}, v2, 7, v13
    v_add_u32 v{G_AW}, 16384, v{G_AW}
    v_xor_b32 v{G_AW+1}, 32, v{G_AW}
    v_xor_b32 v{G_AW+2}, 64, v{G_AW}
    v_xor_b32 v{G_AW+3}, 96, v{G_AW}
    v_lshlrev_b32 v{G_DZ}, 4, v1
    s_lshl_b32 s46, s38, 1
    s_lshl_b32 s47, s35, 2
    s_add_u32 s47, s47, s32
    s_mul_i32 s48, s46, {56*1024}
    s_lshl_b32 s49, s47, 11
    s_add_u32 s48, s48, s49
    s_add_u32 s48, s48, {Z1}
    s_add_u32 s54, s48, {56*1024}
    s_mul_i32 s50, s46, {88*1024}
    s_add_u32 s50, s50, s49
    s_add_u32 s50, s50, {OU + 32*1024}
    s_add_u32 s55, s50, {88*1024}
    s_lshl_b32 s52, s46, 6
    v_lshlrev_b32 v15, 1, v2
    """)
    for r in range(32): a(f"v_mov_b32 v{G_ACC[0]+r}, 0")
    for r in range(24): a(f"v_mov_b32 v{G_FB[1]+r}, 0")
    a(f"s_setprio {GPRIO}")
    if FUSELN: a("s_barrier")
    gemm_stage(a, 0)
    stamp(a, 0)
    gemm_stage(a, 1)
    a("s_mov_b32 s53, 0")
    a.raw(".p2align 3")
    a.label("k2_gloop")
    for s in (2, 0, 1): gemm_stage(a, s)
    a("s_add_u32 s53, s53, 1")
    a("s_cmp_lt_u32 s53, 9")
    a("s_cbranch_scc1 k2_gloop")
    for t in range(2):
        s = (48, 54)[t]
        a(f"buffer_load_dwordx4 {vr(G_Z1+8*t,4)}, v{G_DZ}, s[12:15], s{s} offen")
        a(f"buffer_load_dwordx4 {vr(G_Z1+8*t+4,4)}, v{G_DZ}, s[12:15], s{s} offen offset:1024")
        a(f"buffer_load_ushort v{G_B+t}, v15, s[28:31], s52 offen offset:{64*t}")
    for s in (2, 0, 1): gemm_stage(a, s)
    stamp(a, 1)
    a("s_waitcnt lgkmcnt(0)")
    gemm_mfma(a, 1)
    a("s_waitcnt vmcnt(0)")
    for t in range(2):
        a(f"v_lshlrev_b32 v{G_B+t}, 16, v{G_B+t}")
    T = 16
    for t in range(2):
        z = G_Z1 + 8 * t
        for q in range(8):
            a(f"v_lshlrev_b32 v{T+2*q}, 16, v{z+q}")
            a(f"v_and_b32 v{T+2*q+1}, 0xffff0000, v{z+q}")
        for r in range(16): a(f"v_add_f32 v{G_ACC[t]+r}, v{G_ACC[t]+r}, v{G_B+t}")
        for r in range(16): a(f"v_mul_f32 v{G_ACC[t]+r}, v{G_ACC[t]+r}, v{T+r}")
        for q in range(8): a(f"v_cvt_pk_bf16_f32 v{z+q}, v{G_ACC[t]+2*q}, v{G_ACC[t]+2*q+1}")
        s = (50, 55)[t]
        a(f"buffer_store_dwordx4 {vr(z,4)}, v{G_DZ}, s[12:15], s{s} offen")
        a(f"buffer_store_dwordx4 {vr(z+4,4)}, v{G_DZ}, s[12:15], s{s} offen offset:1024")
    a("s_endpgm")


def loader_z(a):
    a(f"""
    s_sub_u32 s44, s32, 4
    s_lshl_b32 s44, s44, 1
    s_lshl_b32 s42, s44, 12
    s_lshl_b32 s45, s35, 2
    s_add_u32 s44, s44, s45
    s_lshl_b32 s40, s44, 17
    s_add_u32 s40, s40, {Z2N}
    s_add_u32 s41, s40, 131072
    v_lshlrev_b32 v{G_DZ}, 4, v1
    """)
    a(f"s_setprio {LPRIO}")
    def dma(slot):
        for i, s in enumerate((40, 41)):
            a(f"s_add_u32 m0, s42, {slot*GST + 4096*i}")
            a("s_nop 0")
            for p in range(4):
                a(f"buffer_load_dwordx4 v{G_DZ}, s[12:15], s{s} offen offset:{1024*p}{ZSC} lds")
            a(f"s_add_u32 s{s}, s{s}, 4096")
    if FUSELN: a("s_barrier")
    loader_loop(a, dma, "k2_lz", False)


def loader_loop(a, dma, lab, b2_after):
    dma(0); dma(1)
    if b2_after: a("s_barrier")
    a("s_mov_b32 s53, 0")
    a.label(lab)
    for s in (0, 1, 2):
        a("s_waitcnt vmcnt(8)")
        a("s_barrier")
        dma((s + 2) % 3)
    a("s_add_u32 s53, s53, 1")
    a("s_cmp_lt_u32 s53, 10")
    a(f"s_cbranch_scc1 {lab}")
    a("s_waitcnt vmcnt(8)")
    a("s_barrier")
    a("s_waitcnt vmcnt(0)")
    a("s_barrier")
    a("s_endpgm")


def loader_w(a):
    a(f"""
    s_lshl_b32 s40, s38, 18
    v_lshrrev_b32 v13, 3, v1
    v_and_b32 v14, 7, v1
    v_lshrrev_b32 v15, 4, v1
    v_xor_b32 v14, v14, v15
    v_lshlrev_b32 v14, 4, v14
    v_lshl_add_u32 v4, v13, 12, v14
    v_xor_b32 v5, 64, v4
    v_add_u32 v5, {32768-1024}, v5
    """)
    a(f"s_setprio {LPRIO}")
    def dma(slot):
        for h in range(2):
            a(f"s_mov_b32 m0, {slot*GST + 16384 + 4096*h}")
            for q in range(2):
                a(f"s_add_u32 s41, s40, {(4*h+2*q)*32768 - 2048*q}")
                a(f"buffer_load_dwordx4 v4, s[8:11], s41 offen offset:{2048*q} lds")
                a(f"buffer_load_dwordx4 v5, s[8:11], s41 offen offset:{2048*q+1024} lds")
        a("s_add_u32 s40, s40, 128")
    loader_loop(a, dma, "k2_lw", FUSELN)


def toucher(a):
    a(f"""
    s_lshl_b32 s40, s35, 19
    s_add_u32 s40, s40, {Z2N}
    s_lshl_b32 s41, s38, 18
    s_and_b32 s46, s38, 3
    v_lshlrev_b32 v4, 17, v3
    v_lshl_add_u32 v4, v2, 7, v4
    v_lshlrev_b32 v5, 12, v1
    s_lshl_b32 s47, s35, 7
    s_add_u32 s47, s47, s41
    """)
    a(f"s_setprio {LPRIO}")
    stamp(a, 0)
    for i in range(5 if int(E("WTOUCH", "0")) else 0):
        if i == 4:
            a("s_cmp_lt_u32 s35, 4")
            a("s_cbranch_scc0 k2_tw_done")
        a(f"buffer_load_dword v10, v5, s[8:11], s47 offen offset:{896*i}")
    a.label("k2_tw_done")
    if FUSELN:
        a(f"""
        s_lshl_b32 s44, s35, 12
        s_add_u32 s44, s44, {FL}
        s_lshl_b32 s45, s38, 7
        s_add_u32 s45, s45, s44
        v_mov_b32 v6, 1
        v_mov_b32 v7, 0
        v_lshlrev_b32 v8, 7, v2
        s_mov_b64 exec, 1
        buffer_store_dword v6, v7, s[12:15], s45 offen sc1
        s_mov_b64 exec, -1
        s_mov_b32 s53, 0
        """)
        a.label("k2_poll")
        a(f"""
        buffer_load_dword v9, v8, s[12:15], s44 offen sc1
        s_add_u32 s53, s53, 1
        s_waitcnt vmcnt(0)
        v_cmp_ne_u32 vcc, 1, v9
        s_cmp_ge_u32 s53, 0x40000
        s_cbranch_scc1 k2_poll_done
        s_cbranch_vccz k2_poll_done
        s_sleep {E("PSLEEP", "2")}
        s_branch k2_poll
        """)
        a.label("k2_poll_done")
        stamp(a, 1)
        a("s_barrier")
    nb = 0
    for st in range(2, NSTG):
        if st >= PDIST + 2:
            a("s_barrier"); nb += 1
        a(f"s_cmp_eq_u32 s46, {st & 3}")
        a(f"s_cbranch_scc0 k2_tz{st}")
        a(f"s_add_u32 s44, s40, {st*4096}")
        a(f"s_add_u32 s45, s40, {st*4096 + 262144}")
        a("buffer_load_dword v10, v4, s[12:15], s44 offen")
        a("buffer_load_dword v11, v4, s[12:15], s45 offen")
        a.label(f"k2_tz{st}")
    if int(E("K2W3", "1")):
        a.comment("prefetch K3 weights into this XCD's L2")
        a("""
        s_load_dwordx2 s[16:17], s[0:1], 16
        s_load_dwordx2 s[18:19], s[0:1], 56
        s_lshl_b32 s44, s34, 15
        s_mul_i32 s45, s34, 24576
        v_lshlrev_b32 v4, 7, v1
        v_add_u32 v5, s45, v4
        s_waitcnt lgkmcnt(0)
        """)
        srd(a, 8, 16, 17, 512 * 1024)
        srd(a, 28, 18, 19, 896 * 1024)
        for i in range(4):
            a(f"buffer_load_dword v10, v4, s[28:31], s44 offen")
            a(f"s_add_u32 s44, s44, 8192")
        for i in range(3):
            a(f"buffer_load_dword v10, v5, s[8:11], 0 offen")
            a(f"v_add_u32 v5, 8192, v5")
    for i in range(NSTG - nb): a("s_barrier")
    a("s_endpgm")


def gemm(a):
    a(f"""
    s_mul_i32 s44, s34, 37
    s_lshr_b32 s44, s44, 8
    s_mul_i32 s45, s44, 7
    s_sub_u32 s35, s34, s45
    s_lshl_b32 s38, s33, 2
    s_add_u32 s38, s38, s44
    """)
    if FUSELN:
        if int(E("LNPRIO", "3")): a("s_setprio " + E("LNPRIO", "3"))
        emit_ln(a, 12, 35, 38, 32, 1, 4, 40, " sc1")
        a("s_waitcnt vmcnt(0)")
        a.vm_q = []
        a("s_barrier")
    a("s_cmp_ge_u32 s32, 4")
    a("s_cbranch_scc1 k2_gld")
    c = fork(a); gemm_compute(c)
    l = fork(a)
    l.label("k2_gld")
    l("s_cmp_ge_u32 s32, 6")
    l("s_cbranch_scc1 k2_gld2")
    lz = fork(l); loader_z(lz)
    l2 = fork(l)
    l2.label("k2_gld2")
    l2("s_cmp_eq_u32 s32, 6")
    l2("s_cbranch_scc0 k2_gld3")
    lw = fork(l2); loader_w(lw)
    t = fork(l2)
    t.label("k2_gld3")
    toucher(t)
    return [c, l, lz, l2, lw, t]


def gate(a):
    a.label("k2_gate")
    a(f"""
    s_load_dwordx2 s[16:17], s[0:1], 0
    s_load_dwordx2 s[18:19], s[0:1], 64
    s_setprio 3
    s_lshl_b32 s38, s33, 2
    s_add_u32 s38, s38, s34
    s_sub_u32 s38, s38, 28
    s_lshl_b32 s38, s38, 3
    s_add_u32 s38, s38, s32
    s_lshl_b32 s40, s38, 13
    s_lshl_b32 s41, s38, 5
    s_add_u32 s41, s41, {G}
    v_lshlrev_b32 v4, 4, v1
    s_add_u32 s42, s40, 4096
    s_waitcnt lgkmcnt(0)
    """)
    srd(a, 8, 16, 17, 2097152)
    srd(a, 28, 18, 19, 1024)
    a("buffer_load_dwordx4 v[8:11], v4, s[28:31], 0 offen")
    for r in range(8):
        a(f"buffer_load_dwordx4 {vr(16+4*r,4)}, v4, s[8:11], s{40 if r < 4 else 42} offen offset:{1024*(r%4)}")
    a("s_waitcnt vmcnt(0)")
    for i in range(4):
        for r in range(8):
            a(f"v_dot2_f32_bf16 v{48+r}, v{16+4*r+i}, v{8+i}, {'0' if i == 0 else f'v{48+r}'}")
    for ctl in ("quad_perm:[1,0,3,2]", "quad_perm:[2,3,0,1]", "row_half_mirror", "row_mirror"):
        a("s_nop 1")
        for r in range(8): a(f"v_add_f32_dpp v{56+r}, v{48+r}, v{48+r} {ctl} row_mask:0xf bank_mask:0xf")
        for r in range(8): a(f"v_mov_b32 v{48+r}, v{56+r}")
    a("s_nop 1")
    for r in range(8):
        for q in range(4): a(f"v_readlane_b32 s{44+q}, v{48+r}, {16*q}")
        a("s_nop 1")
        a(f"v_mov_b32 v{56+r}, s44")
        for q in range(1, 4): a(f"v_add_f32 v{56+r}, s{44+q}, v{56+r}")
    for r in range(8): a(f"v_mul_f32 v{56+r}, {f32(-LOG2E)}, v{56+r}")
    for r in range(8): a(f"v_exp_f32 v{56+r}, v{56+r}")
    for r in range(8): a(f"v_add_f32 v{56+r}, 1.0, v{56+r}")
    for r in range(8): a(f"v_rcp_f32 v{56+r}, v{56+r}")
    a("""
    v_mov_b32 v4, 0
    s_mov_b64 exec, 1
    buffer_store_dwordx4 v[56:59], v4, s[12:15], s41 offen
    buffer_store_dwordx4 v[60:63], v4, s[12:15], s41 offen offset:16
    """)


def k2():
    a = Asm()
    a(f"""
    s_cmp_ge_u32 s2, {K2_GRID}
    s_cbranch_scc1 k2_exit
    s_load_dwordx2 s[24:25], s[0:1], 88
    s_load_dwordx4 s[16:19], s[0:1], 40
    v_and_b32 v1, 63, v0
    v_lshrrev_b32 v4, 6, v0
    v_and_b32 v2, 31, v0
    v_readfirstlane_b32 s32, v4
    v_bfe_u32 v3, v0, 5, 1
    s_and_b32 s33, s2, 7
    s_lshr_b32 s44, s2, 3
    s_and_b32 s34, s44, 31
    s_waitcnt lgkmcnt(0)
    """)
    srd(a, 12, 24, 25, WS_SIZE)
    a("s_cmp_lt_u32 s44, 32")
    a("s_cbranch_scc0 k2_gemm")
    at = fork(a)
    if E("NOATT"): at("s_endpgm")
    attention(at)
    g = fork(a)
    g.label("k2_gemm")
    g("s_cmp_ge_u32 s34, 28")
    g("s_cbranch_scc1 k2_gate")
    if E("NOGEMM"): g("s_endpgm")
    srd(g, 8, 16, 17, 2048 * 4096)
    srd(g, 28, 18, 19, 4096)
    c, l, lz, l2, lw, t = gemm(g)
    x = Asm()
    gate(x)
    x.label("k2_exit")
    x("s_endpgm")
    def loopdup(lines, lab):
        i = lines.index(lab + ":")
        j = max(k for k, l in enumerate(lines) if l.strip().endswith(" " + lab))
        return lines[i:j + 1] * 2
    errs = check_hazards(a.lines + at.lines, "k2/attn") + check_hazards(x.lines, "k2/gate")
    for nm, p in (("c", [c]), ("lz", [l, lz]), ("lw", [l, l2, lw]), ("t", [l, l2, t])):
        errs += check_hazards(a.lines + g.lines + sum((q.lines for q in p), []), "k2/g" + nm)
    for lab in ("k2_aloop", "k2_af1", "k2_af2"): errs += check_hazards(loopdup(at.lines, lab), "k2/" + lab)
    errs += check_hazards(loopdup(c.lines, "k2_gloop"), "k2/gloop")
    errs += check_hazards(loopdup(lz.lines, "k2_lz"), "k2/lz") + check_hazards(loopdup(lw.lines, "k2_lw"), "k2/lw")
    return header("k2_kernel") + "".join(q.text() for q in (a, at, g, c, l, lz, l2, lw, t, x)), desc("k2_kernel", 120, 120), errs
```

```python
from common import *
E = os.environ.get

K3_LDS = 163840
K3_BLOCK = 512
SLOT = 32768
NST = 11
NU = 7
ACC = [64, 80]
FB = [16, 32, 48]
OSC = " sc1" if int(E("K3SC", "0")) else ""


def dma(a, st):
    base = (st % 5) * SLOT
    S = "s[28:31]" if st < NU else "s[8:11]"
    if st == NU:
        a("s_mov_b32 s41, s47")
        a(f"s_sub_u32 s40, s40, {88*1024}")
    a(f"s_add_u32 m0, s42, {base}")
    a("s_nop 0")
    for p in range(4):
        a.vm(f"buffer_load_dwordx4 v4, s[12:15], s40 offen offset:{1024*p} lds", ("st", st))
    a("s_add_u32 s40, s40, 8192")
    for p in range(4):
        a(f"s_add_u32 m0, s42, {base + 16384 + 1024*p}")
        a(f"s_add_u32 s44, s41, {8192*p}")
        a.vm(f"buffer_load_dwordx4 v5, {S}, s44 offen lds", ("st", st))
    a(f"s_add_u32 s41, s41, {128*1024}")


def k3():
    a = Asm()
    a("""
    s_cmp_ge_u32 s2, 256
    s_cbranch_scc1 k3_exit
    s_load_dwordx2 s[24:25], s[0:1], 88
    s_load_dwordx2 s[18:19], s[0:1], 56
    s_load_dwordx2 s[16:17], s[0:1], 16
    s_load_dwordx2 s[20:21], s[0:1], 72
    v_and_b32 v1, 63, v0
    v_lshrrev_b32 v4, 6, v0
    v_and_b32 v2, 31, v0
    v_readfirstlane_b32 s32, v4
    v_bfe_u32 v3, v0, 5, 1
    s_and_b32 s33, s2, 7
    s_lshr_b32 s44, s2, 3
    s_and_b32 s34, s44, 7
    s_lshr_b32 s37, s44, 3
    s_lshl_b32 s33, s33, 2
    s_add_u32 s35, s37, s33
    s_and_b32 s36, s32, 3
    s_cmp_ge_u32 s32, 4
    s_cbranch_scc0 k3_comp
    """)
    l = fork(a)
    l(f"""
    s_lshr_b32 s44, s36, 1
    s_lshl_b32 s45, s35, 1
    s_add_u32 s44, s44, s45
    s_mul_i32 s40, s44, {88*1024}
    s_and_b32 s45, s36, 1
    s_lshl_b32 s45, s45, 12
    s_add_u32 s40, s40, s45
    s_add_u32 s40, s40, {OU + 32*1024}
    s_lshl_b32 s41, s36, 15
    s_lshl_b32 s45, s34, 7
    s_add_u32 s41, s41, s45
    s_mov_b32 s47, s41
    s_lshl_b32 s42, s36, 12
    v_lshlrev_b32 v4, 4, v1
    v_lshrrev_b32 v6, 3, v1
    v_and_b32 v7, 7, v1
    v_bfe_u32 v8, v1, 4, 1
    v_lshlrev_b32 v8, 2, v8
    v_xor_b32 v7, v7, v8
    v_lshlrev_b32 v7, 4, v7
    v_lshl_add_u32 v5, v6, 10, v7
    s_waitcnt lgkmcnt(0)
    """)
    srd(l, 12, 24, 25, WS_SIZE)
    srd(l, 28, 18, 19, 896 * 1024)
    srd(l, 8, 16, 17, 512 * 1024)
    for st in range(5): dma(l, st)
    for st in range(NST):
        l.wait(vm=[("st", st)])
        l("s_barrier")
        if st >= 1 and st + 4 < NST: dma(l, st + 4)
    l("s_endpgm")
    c = fork(a)
    c.label("k3_comp")
    c(f"""
    s_mul_i32 s40, s35, {176*1024}
    s_add_u32 s40, s40, {OU}
    v_mul_u32_u24 v13, {88*1024}, v3
    v_lshl_add_u32 v13, v2, 7, v13
    s_waitcnt lgkmcnt(0)
    """)
    srd(c, 12, 24, 25, WS_SIZE)
    T = int(E("K3T", "1"))
    c("s_cmp_eq_u32 s36, 3")
    c("s_cbranch_scc1 k3_tw")
    if T & 3:
        c(f"""
        s_lshl_b32 s44, s34, 12
        s_mul_i32 s45, s34, 7168
        s_lshl_b32 s46, s36, 12
        s_add_u32 s45, s45, s46
        s_add_u32 s45, s45, {32768 - 4096}
        s_cmp_eq_u32 s36, 0
        s_cselect_b32 s44, s44, s45
        s_add_u32 s44, s44, s40
        """)
        if not (T & 2):
            c("s_cbranch_scc1 k3_td") if False else None
            c("s_cmp_eq_u32 s36, 0")
            c("s_cbranch_scc0 k3_td")
        c("buffer_load_dword v14, v13, s[12:15], s44 offen")
    c("s_branch k3_td")
    c.label("k3_tw")
    if T & 4:
        srd(c, 28, 18, 19, 896 * 1024)
        srd(c, 8, 16, 17, 512 * 1024)
        c("""
        s_lshl_b32 s44, s37, 10
        s_lshl_b32 s45, s34, 7
        s_add_u32 s44, s44, s45
        v_lshlrev_b32 v13, 12, v1
        v_add_u32 v13, s44, v13
        """)
        for i in range(4):
            c(f"buffer_load_dword v14, v13, s[28:31], 0 offen")
            if i < 2: c(f"buffer_load_dword v15, v13, s[8:11], 0 offen")
            c(f"v_add_u32 v13, 0x40000, v13")
    c.label("k3_td")
    c(f"""
    v_bfe_u32 v6, v1, 2, 2
    v_lshl_add_u32 v7, v3, 3, v6
    v_and_b32 v8, 1, v1
    v_bfe_u32 v9, v1, 1, 1
    v_lshl_add_u32 v8, v8, 1, v9
    v_lshlrev_b32 v8, 3, v8
    v_bfe_u32 v9, v1, 4, 1
    v_lshl_add_u32 v8, v9, 5, v8
    s_and_b32 s45, s36, 1
    s_lshl_b32 s46, s45, 6
    v_add_u32 v8, s46, v8
    v_bfe_u32 v9, v1, 3, 1
    v_lshlrev_b32 v9, 6, v9
    v_xor_b32 v8, v8, v9
    v_lshl_add_u32 v10, v7, 7, v8
    v_add_u32 v10, 16384, v10
    s_lshr_b32 s44, s36, 1
    s_lshl_b32 s47, s44, 13
    v_lshlrev_b32 v11, 4, v1
    v_add_u32 v11, s47, v11
    s_lshl_b32 s48, s35, 1
    s_add_u32 s48, s48, s44
    s_lshl_b32 s50, s48, 7
    s_add_u32 s50, s50, {G}
    s_lshl_b32 s48, s48, 15
    s_lshl_b32 s49, s34, 7
    s_add_u32 s48, s48, s49
    s_add_u32 s48, s48, s46
    v_lshlrev_b32 v12, 10, v2
    v_lshl_add_u32 v12, v3, 4, v12
    v_lshlrev_b32 v6, 2, v2
    buffer_load_dword v4, v6, s[12:15], s50 offen
    """)
    srd(c, 4, 20, 21, 2048 * 1024)
    n = 0
    pend = []
    bank = 0
    D = 2
    for st in range(NST):
        s = st % 5
        nb, so = s // 2, (s % 2) * SLOT
        acc = ACC[0] if st < NU else ACC[1]
        for t in range(4):
            if t == 0:
                c.wait(lds_all=True)
                c("s_barrier")
                if st == 0: stamp(c, 0)
                if st == 5: stamp(c, 1)
                if nb != bank:
                    d = ((nb - bank) * 65536) & 0xffffffff
                    c(f"v_add_u32 v10, {d:#x}, v10"); c(f"v_add_u32 v11, {d:#x}, v11")
                    bank = nb
            fb = FB[n % 3]
            m = []
            for e in range(2):
                kk = 2 * t + e
                o = so + kk * 2048
                c.ds(f"ds_read_b64_tr_b16 {vr(fb+8*e,2)}, v10 offset:{o}", n)
                c.ds(f"ds_read_b64_tr_b16 {vr(fb+8*e+2,2)}, v10 offset:{o+512}", n)
                c.ds(f"ds_read_b128 {vr(fb+8*e+4,4)}, v11 offset:{so + kk*1024}", n)
                cc = "0" if (st in (0, NU) and kk == 0) else vr(acc, 16)
                m.append(f"v_mfma_f32_32x32x16_bf16 {vr(acc,16)}, {vr(fb+8*e,4)}, {vr(fb+8*e+4,4)}, {cc}")
            pend.append((n, m))
            if len(pend) > D:
                tg, mm = pend.pop(0)
                c.wait(lds=[tg])
                for x in mm: c(x)
            if st == NU + 1 and t == 0:
                c("s_waitcnt vmcnt(0)")
                c("v_sub_f32 v5, 1.0, v4")
            if st == NU + 1 and t >= 1:
                for r in range(8 * (t - 1), min(16, 8 * t)): c(f"v_mul_f32 v{ACC[0]+r}, v{ACC[0]+r}, v5")
            n += 1
    for tg, mm in pend:
        c.wait(lds=[tg])
        for x in mm: c(x)
    c("s_nop 7"); c("s_nop 3")
    for r in range(16): c(f"v_fmac_f32 v{ACC[0]+r}, v{ACC[1]+r}, v4")
    for q in range(8): c(f"v_cvt_pk_bf16_f32 v{16+q}, v{ACC[0]+2*q}, v{ACC[0]+2*q+1}")
    c(f"buffer_store_dwordx4 v[16:19], v12, s[4:7], s48 offen{OSC}")
    c(f"buffer_store_dwordx4 v[20:23], v12, s[4:7], s48 offen offset:32{OSC}")
    c.label("k3_exit")
    c("s_endpgm")
    errs = check_hazards(a.lines + l.lines, "k3/ld") + check_hazards(a.lines + c.lines, "k3/comp")
    return header("k3_kernel") + a.text() + l.text() + c.text(), desc("k3_kernel", 96, 96), errs
```

```python
from common import *

def emit_ln(a, ws, s_fg, s_tt, s_w, vlane, t0, st0, sc=""):
    S = f"s[{ws}:{ws+3}]"
    va, vs = t0, t0 + 1
    z = [t0 + 4, t0 + 8]
    p = [t0 + 12, t0 + 20]
    tmp = t0 + 28
    a(f"""
    s_lshr_b32 s{st0}, s{s_w}, 1
    s_lshl_b32 s{st0+1}, s{s_fg}, 2
    s_add_u32 s{st0}, s{st0}, s{st0+1}
    s_lshl_b32 s{st0}, s{st0}, 17
    s_lshl_b32 s{st0+1}, s{s_tt}, 1
    s_and_b32 s{st0+2}, s{s_w}, 1
    s_add_u32 s{st0+1}, s{st0+1}, s{st0+2}
    s_lshl_b32 s{st0+1}, s{st0+1}, 11
    s_add_u32 s{st0}, s{st0}, s{st0+1}
    s_lshl_b32 s{st0+1}, s{st0+1}, 1
    s_add_u32 s{st0+1}, s{st0+1}, {ST}
    s_add_u32 s{st0+2}, s{st0}, {Z2}
    s_add_u32 s{st0}, s{st0}, {Z2N}
    v_lshlrev_b32 v{va}, 4, v{vlane}
    v_lshlrev_b32 v{vs}, 5, v{vlane}
    """)
    for e in range(2):
        a.vm(f"buffer_load_dwordx4 {vr(p[e],4)}, v{vs}, {S}, s{st0+1} offen offset:{2048*e}", ("lnp", e))
        a.vm(f"buffer_load_dwordx4 {vr(p[e]+4,4)}, v{vs}, {S}, s{st0+1} offen offset:{2048*e+16}", ("lnp", e))
    for e in range(2):
        a.vm(f"buffer_load_dwordx4 {vr(z[e],4)}, v{va}, {S}, s{st0+2} offen offset:{1024*e}", ("lnz", e))
    a.wait(vm=[("lnp", 1)])
    for e in range(2):
        for i in range(4): a(f"v_add_f32 v{p[e]+i}, v{p[e]+i}, v{p[e]+4+i}")
    for e in range(2):
        a(f"v_add_f32 v{p[e]}, v{p[e]}, v{p[e]+2}")
        a(f"v_add_f32 v{p[e]+1}, v{p[e]+1}, v{p[e]+3}")
    for qp in ("[1,0,3,2]", "[2,3,0,1]"):
        a("s_nop 1")
        for e in range(2):
            a(f"v_add_f32_dpp v{p[e]+2}, v{p[e]}, v{p[e]} quad_perm:{qp} row_mask:0xf bank_mask:0xf")
            a(f"v_add_f32_dpp v{p[e]+3}, v{p[e]+1}, v{p[e]+1} quad_perm:{qp} row_mask:0xf bank_mask:0xf")
        for e in range(2):
            a(f"v_mov_b32 v{p[e]}, v{p[e]+2}")
            a(f"v_mov_b32 v{p[e]+1}, v{p[e]+3}")
    for e in range(2):
        a(f"v_mul_f32 v{p[e]}, {f32(1/896)}, v{p[e]}")
        a(f"v_mul_f32 v{p[e]+1}, {f32(1/896)}, v{p[e]+1}")
    for e in range(2):
        a(f"v_fma_f32 v{p[e]+1}, -v{p[e]}, v{p[e]}, v{p[e]+1}")
    for e in range(2):
        a(f"v_max_f32 v{p[e]+1}, 0, v{p[e]+1}")
    for e in range(2):
        a(f"v_add_f32 v{p[e]+1}, {f32(1e-5)}, v{p[e]+1}")
    for e in range(2):
        a(f"v_rsq_f32 v{p[e]+1}, v{p[e]+1}")
    a("s_nop 0")
    for e in range(2):
        a(f"v_mul_f32_e64 v{p[e]}, -v{p[e]}, v{p[e]+1}")
    for e in range(2):
        a.wait(vm=[("lnz", e)])
        for q in range(4):
            a(f"v_lshlrev_b32 v{tmp+2*q}, 16, v{z[e]+q}")
            a(f"v_and_b32 v{tmp+2*q+1}, 0xffff0000, v{z[e]+q}")
        for q in range(8):
            a(f"v_fma_f32 v{tmp+q}, v{tmp+q}, v{p[e]+1}, v{p[e]}")
        for q in range(4):
            a(f"v_cvt_pk_bf16_f32 v{z[e]+q}, v{tmp+2*q}, v{tmp+2*q+1}")
        a.vm(f"buffer_store_dwordx4 {vr(z[e],4)}, v{va}, {S}, s{st0} offen offset:{1024*e}{sc}", "lnst")

def kln():
    a = Asm()
    a("""
    s_cmp_ge_u32 s2, 224
    s_cbranch_scc1 kln_exit
    s_load_dwordx2 s[24:25], s[0:1], 88
    v_and_b32 v1, 63, v0
    v_lshrrev_b32 v2, 6, v0
    s_and_b32 s33, s2, 31
    v_readfirstlane_b32 s32, v2
    s_lshr_b32 s34, s2, 5
    s_waitcnt lgkmcnt(0)
    """)
    srd(a, 12, 24, 25, WS_SIZE)
    emit_ln(a, 12, 34, 33, 32, 1, 4, 40)
    a.label("kln_exit")
    a("s_endpgm")
    return header("kln_kernel") + a.text(), desc("kln_kernel", 48, 48), check_hazards(a.lines, "kln")
```

```python
import copy, struct, math, os
from asmlib import Asm, check_hazards

QF = 0x000000
KF = 0x200000
VF = 0x400000
Z1 = 0x600000
Z2 = 0xA00000
Z2N = 0xE00000
ST = 0x1200000
G = 0x1240000
FL = 0x1250000
OU = 0x1400000
WS_SIZE = 268435456
TS = 0x1A00000

LOG2E = 1.4426950408889634
QSCALE = 0.25 * LOG2E
GC1 = -2.0 * math.sqrt(2.0 / math.pi) * LOG2E
GC2 = GC1 * 0.044715


def f32(x):
    return "0x%08x" % struct.unpack("<I", struct.pack("<f", x))[0]


def fork(a):
    b = Asm()
    b.lds_q = list(a.lds_q)
    b.vm_q = list(a.vm_q)
    return b


def vr(base, n, p="v"):
    return f"{p}[{base}:{base + n - 1}]" if n > 1 else f"{p}{base}"


def srd(a, d, lo, hi, size):
    a(f"s_mov_b32 s{d}, s{lo}")
    a(f"s_mov_b32 s{d+1}, s{hi}")
    a(f"s_mov_b32 s{d+2}, {size}")
    a(f"s_mov_b32 s{d+3}, 0x00020000")


def header(name):
    return f""".globl {name}
.p2align 8
.type {name},@function
{name}:
"""


def desc(name, nvgpr, accum, nsgpr=102 if os.environ.get("STAMP") else 96):
    return f""".p2align 6
.amdhsa_kernel {name}
  .amdhsa_next_free_vgpr {nvgpr}
  .amdhsa_next_free_sgpr {nsgpr}
  .amdhsa_accum_offset {accum}
  .amdhsa_group_segment_fixed_size 0
  .amdhsa_kernarg_size 96
  .amdhsa_user_sgpr_count 2
  .amdhsa_user_sgpr_kernarg_segment_ptr 1
  .amdhsa_system_sgpr_workgroup_id_x 1
.end_amdhsa_kernel
"""

import os
def stamp(a, i):
    if os.environ.get("STAMP"):
        r = STREG[i]
        a(f"s_memtime s[{r}:{r+1}]")
STREG = [84, 86, 76, 78, 96, 98, 100]
```

```python
import sys, os, subprocess
sys.path.insert(0, os.path.dirname(os.path.abspath(__file__)))
from common import *
import importlib

REF = open("gated_mix__mha_block__mixer_gmlp__prompt.s.ref").read()
HEAD = "".join(l + "\n" for l in REF.splitlines()[:13])

def build(kernels, out):
    txt, dsc, errs, launches = "", "", [], ""
    seen = set()
    for fn, name, grid, block, lds in kernels:
        launches += f"; @launch kernel={name} grid=({grid},1,1) block=({block},1,1) lds={lds}\n"
        if name in seen: continue
        seen.add(name)
        t, d, e = fn()
        if os.environ.get("STAMP"):
            ki = len(seen) - 1
            t = t.replace(name + ":\n", name + ":\n    s_memrealtime s[90:91]\n    s_memtime s[80:81]\n" + "".join(f"    s_mov_b32 s{r}, 0\n" for r in STREG), 1)
            t = t.replace("    s_endpgm\n", f"    s_branch {name}_stamp\n")
            t += f"""{name}_stamp:
    s_waitcnt vmcnt(0) lgkmcnt(0)
    s_memrealtime s[92:93]
    s_memtime s[82:83]
    s_load_dwordx2 s[94:95], s[0:1], 88
    s_getreg_b32 s88, hwreg(HW_REG_HW_ID)
    s_getreg_b32 s89, hwreg(HW_REG_XCC_ID)
    v_lshrrev_b32 v1, 6, v0
    s_lshl_b32 s87, s2, 3
    v_add_u32 v1, s87, v1
    v_lshlrev_b32 v1, 6, v1
    v_add_u32 v1, {TS + ki * 0x80000:#x}, v1
    s_waitcnt lgkmcnt(0)
    v_mov_b32 v4, s90
    v_mov_b32 v5, s92
    v_mov_b32 v6, s88
    v_mov_b32 v7, s89
    v_mov_b32 v8, s80
    v_mov_b32 v9, s82
    v_mov_b32 v10, s84
    v_mov_b32 v11, s86
    v_mov_b32 v12, s76
    v_mov_b32 v13, s78
    v_mov_b32 v14, s96
    v_mov_b32 v15, s98
    v_mov_b32 v16, s100
    s_mov_b64 exec, 1
    global_store_dwordx4 v1, v[4:7], s[94:95]
    global_store_dwordx4 v1, v[8:11], s[94:95] offset:16
    global_store_dwordx4 v1, v[12:15], s[94:95] offset:32
    global_store_dword v1, v16, s[94:95] offset:48
    s_endpgm
"""
        txt += t; dsc += d; errs += e
    asm = HEAD + launches + '.amdgcn_target "amdgcn-amd-amdhsa--gfx950"\n.text\n' + txt + '.section .rodata,"a"\n' + dsc
    open(out, "w").write(asm)
    for e in errs[:40]: print(e)
    print("hazard errors:", len(errs), " size:", len(asm))
    return asm

if __name__ == "__main__":
    from k1 import k1
    ks = [(k1, "k1_kernel", 256, 512, 163840)]
    try:
        from kln import kln
        if not int(os.environ.get("FUSELN", "1")): ks.append((kln, "kln_kernel", 224, 512, 0))
    except ImportError: pass
    try:
        from k2 import k2, K2_GRID, K2_LDS
        ks.append((k2, "k2_kernel", K2_GRID, 512, K2_LDS))
    except ImportError: pass
    try:
        from k3 import k3, K3_LDS, K3_BLOCK
        if not int(os.environ.get("FUSE3", "1")): ks.append((k3, "k3_kernel", 256, K3_BLOCK, K3_LDS))
    except ImportError: pass
    out = sys.argv[1] if len(sys.argv) > 1 else "gated_mix__mha_block__mixer_gmlp__prompt.s"
    build(ks, out)
```

```python
from common import *

E = os.environ.get
SC = " sc1" if int(E("K1SC", "0")) else ""
SLOT = 32768
NSLOT = 5
D = 2
NB = D + 1
FB = 36
ACC = [64, 80, 96]
TMP = 20
OUT = 28
V_C2, V_SUM, V_SQ = 14, 15, 16
V_X0, V_X1, V_W0, V_W1, V_WQ, V_WS = 2, 3, 4, 5, 60, 61
V_L, V_Z0, V_Z1, V_V = 112, 12, 13, 113
V_N, V_H = 17, 18
V_RP, V_RS = 10, 11
V_T0, V_T1 = 62, 63


def slot_off(stage):
    s = stage % NSLOT
    return s // 2, (s % 2) * SLOT


LA = int(E("K1L", "2"))
E1 = int(E("K1E1", "80"))
def dma_list(stage):
    base = (stage % NSLOT) * SLOT
    out = []
    if stage < 8:
        out.append(([f"s_add_u32 s53, s75, {stage}", "s_and_b32 s53, s53, 7", "s_lshl_b32 s45, s53, 7", "s_add_u32 s45, s45, s38", f"s_add_u32 m0, s48, {base}"], f"buffer_load_dwordx4 v{V_X0}, s[4:7], s45 offen lds", []))
        out.append(([f"s_add_u32 m0, s48, {base+1024}", "s_nop 0"], f"buffer_load_dwordx4 v{V_X1}, s[4:7], s45 offen lds", []))
        out.append(([f"s_add_u32 m0, s44, {base+16384}", f"s_mul_i32 s45, s53, {64*3584}", "s_add_u32 s45, s45, s39"], f"buffer_load_dwordx4 v{V_W0}, s[8:11], s45 offen lds", []))
        out.append(([f"s_add_u32 m0, s44, {base+24576}", "s_mul_i32 s45, s53, s43", "s_add_u32 s45, s45, s40"], f"buffer_load_dwordx4 v{V_W1}, s[28:31], s45 offen lds", []))
    elif stage < 10:
        for uu in range(4):
            c = 4 * (stage - 8) + uu
            out.append(([f"s_add_u32 m0, s44, {base+uu*8192}", f"s_add_u32 s53, s75, {c}", "s_and_b32 s53, s53, 7", f"s_mul_i32 s45, s53, {64*3072}", "s_add_u32 s45, s45, s41"], f"buffer_load_dwordx4 v{V_WQ}, s[64:67], s45 offen lds", []))
    elif stage == 10:
        for p in range(4):
            out.append(([f"s_add_u32 m0, s44, {base+p*8192}", f"s_add_u32 s53, s54, {2*p}", "s_and_b32 s53, s53, 7", f"s_mul_i32 s45, s53, {64*3584}", "s_add_u32 s45, s45, s42"], f"buffer_load_dwordx4 v{V_WS}, s[8:11], s45 offen lds", []))
    return out


def emit_dma(a, item, stage, track=True):
    pre, ld, post = item
    for p in pre: a(p)
    if "m0" in pre[-1]: a("s_nop 0")
    if track: a.vm(ld, ("st", stage))
    else: a(ld)
    for p in post: a(p)


def xfrag(s):
    return f"a[{4*s}:{4*s+3}]"


def mfma(acc, A, B, first):
    c = "0" if first else vr(acc, 16)
    return f"v_mfma_f32_32x32x16_bf16 {vr(acc,16)}, {A}, {B}, {c}"


def tr2(dst, addr, off):
    return [f"ds_read_b64_tr_b16 {vr(dst,2)}, v{addr} offset:{off[0]}", f"ds_read_b64_tr_b16 {vr(dst+2,2)}, v{addr} offset:{off[1]}"]


def steps_phase1():
    out = []
    for u in range(8):
        _, so = slot_off(u)
        for j in range(4):
            s = 4 * u + j
            def mk(b, u=u, j=j, s=s, so=so):
                fb = FB + 8 * b
                r = [f"ds_read_b128 {xfrag(s)}, v{6+j} offset:{so}"]
                r += tr2(fb, V_RP, [so + 16384 + (16*j) * 128, so + 16384 + (16*j+4) * 128])
                r += tr2(fb + 4, V_RP, [so + 24576 + (16*j) * 128, so + 24576 + (16*j+4) * 128])
                m = [mfma(ACC[0], vr(fb, 4), xfrag(s), s == 0), mfma(ACC[1], vr(fb+4, 4), xfrag(s), s == 0)]
                return r, m
            out.append((u, j == 0, mk))
    return out


def steps_pair(acc, swap):
    out = []
    for t in range(16):
        def mk(b, t=t):
            fb = FB + 8 * b
            r, m = [], []
            for e in range(2):
                s = 2 * t + e
                o = s * 2048
                r += tr2(fb + 4*e, V_RP, [o, o + 512])
                A, B = vr(fb + 4*e, 4), xfrag(s)
                if swap: A, B = B, A
                m.append(mfma(acc, A, B, s == 0))
            return r, m
        out.append((None, False, mk))
    return out


def steps_single(acc):
    out = []
    for t in range(16):
        def mk(b, t=t):
            fb = FB + 8 * b
            r, m = [], []
            for e in range(2):
                s = 2 * t + e
                o = s * 1024
                r += tr2(fb + 4*e, V_RS, [o, o + 256])
                m.append(mfma(acc, vr(fb + 4*e, 4), xfrag(s), s == 0))
            return r, m
        out.append((None, False, mk))
    return out


class Pipe:
    def __init__(self):
        self.n = 0; self.pend = []; self.dmaq = []; self.bank = 0; self.epi = []
    def clone(self):
        p = Pipe(); p.n = self.n; p.pend = list(self.pend); p.dmaq = list(self.dmaq); p.bank = self.bank; p.epi = list(self.epi)
        return p


def emit_epi(a, P, quota):
    k = 0
    while P.epi and (quota is None or k < quota):
        kind, text, ready = P.epi[0]
        if quota is not None and ready > P.n: break
        P.epi.pop(0)
        if kind == "vm": a.vm(text, "out")
        else: a(text)
        if kind != "s": k += 1


def boundary(a, P, stage):
    a.comment(f"---- stage {stage}")
    while P.dmaq:
        it, st = P.dmaq.pop(0); emit_dma(a, it, st)
    a.wait(vm=[("st", stage)], lds_all=True)
    a("s_barrier")
    if stage == 0: stamp(a, 0)
    if stage == 1: stamp(a, 4)
    if stage == 4: stamp(a, 5)
    nb, _ = slot_off(stage)
    if nb != P.bank:
        d = (nb - P.bank) * 65536
        for r in [6, 7, 8, 9, V_RP]:
            a(f"v_add_u32 v{r}, {d & 0xffffffff:#x}, v{r}")
        P.bank = nb
    if stage == 1:
        a("s_mov_b64 exec, 1")
        a.vm(f"buffer_store_dword v{V_SUM}, v{V_SUM}, s[12:15], s72 offen", "out")
        a("s_mov_b64 exec, 15")
        a("s_lshl_b32 s72, s2, 6")
        a(f"s_add_u32 s72, s72, {FL + 0x8000}")
        a.vm(f"buffer_store_dwordx4 {vr(P_SUM,4)}, v{V_L}, s[12:15], s72 offen", "out")
        a("s_mov_b64 exec, -1")
    if stage == SSTAGE:
        a.comment("single tile weights (X only); untracked in the common path (waits only get stricter)")
        a("s_cmp_eq_u32 s35, 0")
        a("s_cbranch_scc0 k1_nos")
        for it in dma_list(10): emit_dma(a, it, 10, False)
        a.label("k1_nos")
        a.single_at = a.vm_total
    for st in SCHED.get(stage, []):
        P.dmaq += [(it, st) for it in dma_list(st)]


SSTAGE = int(E("K1SS", "7"))
SCHED = {}
for st in range(LA, 10):
    SCHED.setdefault(min(st - LA, 7), []).append(st)


def post_barrier(q, Q, single):
    if single is not None:
        pos = len(q.vm_q) - single
        if pos >= 0: q.vm_q[pos:pos] = [("st", 10)] * 4
    drain(q, Q)
    q("s_nop 7"); q("s_nop 3")
    Q.n += 100
    emit_epi(q, Q, E1)
    q.wait(vm=[("st", 8), ("st", 9), ("st", 10)], lds_all=True)
    q("s_barrier")
    stamp(q, 1)
    if int(E("K1W", "1")):
        q.vm(f"buffer_load_dword v{V_T1}, v{V_T0}, s[68:71], s73 offen", "out")


def run_steps(a, P, steps, quota):
    for (stage, first, mk) in steps:
        if first: boundary(a, P, stage)
        r, m = mk(P.n % NB)
        tag = ("rd", P.n)
        for x in r: a.ds(x, tag)
        P.pend.append((tag, m))
        if len(P.pend) > D:
            t, mm = P.pend.pop(0)
            a.wait(lds=[t])
            if quota and SPLIT:
                a(mm[0]); emit_epi(a, P, quota // 2); a(mm[1]);
            else:
                for x in mm: a(x)
        for _ in range(2 if len(P.dmaq) > 4 else 1):
            if P.dmaq:
                it, st = P.dmaq.pop(0); emit_dma(a, it, st)
        P.n += 1
        emit_epi(a, P, (quota - quota // 2) if (quota and SPLIT) else quota)

SPLIT = int(E("K1SPLIT", "1"))


def drain(a, P, quota=None):
    while P.pend:
        t, mm = P.pend.pop(0)
        a.wait(lds=[t])
        for x in mm: a(x)
        P.n += 1
        if quota: emit_epi(a, P, quota)


PK = int(E("K1PK", "1"))
P_SUM, P_SQ = 114, 116
def epi_cvt_store(acc, scale, stores, ready):
    e = []
    for g in range(2):
        o = OUT + 4 * g
        if scale:
            if PK:
                for r in range(0, 8, 2): e.append(("v", f"v_pk_mul_f32 {vr(acc+8*g+r,2)}, {vr(acc+8*g+r,2)}, s[52:53] op_sel_hi:[1,0]", ready))
            else:
                for r in range(8): e.append(("v", f"v_mul_f32 v{acc+8*g+r}, s52, v{acc+8*g+r}", ready))
        for q in range(4):
            e.append(("v", f"v_cvt_pk_bf16_f32 v{o+q}, v{acc+8*g+2*q}, v{acc+8*g+2*q+1}", ready))
        pre, st = stores[g]
        for p in pre: e.append(("s", p, ready))
        e.append(("vm", st.format(d=vr(o, 4)), ready))
    return e


def epi_gelu(acc, soff, ready, stats):
    e = []
    for g in range(2):
        o = OUT + 4 * g
        xs = [vr(acc + 8 * g + 2 * i, 2) for i in range(4)]
        ts = [vr(TMP + 2 * i, 2) for i in range(4)]
        for x, t in zip(xs, ts): e.append(f"v_pk_mul_f32 {t}, {x}, {x}")
        for x, t in zip(xs, ts): e.append(f"v_pk_fma_f32 {t}, {t}, s[26:27], s[26:27] op_sel:[0,0,1] op_sel_hi:[1,0,1]")
        for x, t in zip(xs, ts): e.append(f"v_pk_mul_f32 {t}, {t}, {x}")
        for i in range(8): e.append(f"v_exp_f32 v{TMP+i}, v{TMP+i}")
        for x, t in zip(xs, ts): e.append(f"v_pk_add_f32 {t}, {t}, 1.0 op_sel_hi:[1,0]")
        for i in range(8): e.append(f"v_rcp_f32 v{TMP+i}, v{TMP+i}")
        for x, t in zip(xs, ts): e.append(f"v_pk_mul_f32 {t}, {t}, {x}")
        for i, t in enumerate(ts):
            if stats:
                e.append(f"v_pk_add_f32 {vr(P_SUM,2)}, {vr(P_SUM,2)}, {t}")
                e.append(f"v_pk_fma_f32 {vr(P_SQ,2)}, {t}, {t}, {vr(P_SQ,2)}")
            e.append(f"v_cvt_pk_bf16_f32 v{o+i}, v{TMP+2*i}, v{TMP+2*i+1}")
        e.append(("vm", f"buffer_store_dwordx4 {vr(o,4)}, v{V_Z0+g}, s[12:15], s{soff} offen{SC}"))
    return [(x[0], x[1], ready) if isinstance(x, tuple) else ("v", x, ready) for x in e]


def uses(epi, acc):
    from asmlib import regs_of
    names = {("v", acc + i) for i in range(16)}
    return any(names & regs_of(t) for (_, t, _) in epi)


def k1():
    a = Asm()
    a("""
    s_cmp_ge_u32 s2, 256
    s_cbranch_scc1 k1_exit
    s_load_dwordx4 s[16:19], s[0:1], 0
    s_load_dwordx4 s[20:23], s[0:1], 32
    s_load_dwordx2 s[24:25], s[0:1], 88
    v_and_b32 v1, 63, v0
    v_lshrrev_b32 v17, 6, v0
    s_and_b32 s45, s2, 7
    v_readfirstlane_b32 s32, v17
    s_lshr_b32 s46, s2, 3
    s_and_b32 s33, s45, 1
    s_lshl_b32 s33, s33, 3
    s_and_b32 s37, s46, 7
    s_add_u32 s33, s33, s37
    s_lshr_b32 s34, s46, 3
    s_lshr_b32 s35, s34, 1
    s_and_b32 s36, s45, 6
    s_and_b32 s47, s34, 1
    s_add_u32 s36, s36, s47
    """)
    a("""
    s_lshl_b32 s44, s32, 10
    s_lshl_b32 s48, s32, 11
    s_and_b32 s50, s32, 3
    s_lshl_b32 s47, s33, 2
    s_add_u32 s50, s50, s47
    s_lshr_b32 s51, s32, 2
    s_lshl_b32 s38, s33, 17
    s_lshl_b32 s47, s32, 14
    s_add_u32 s38, s38, s47
    """)
    a(f"""
    s_lshl_b32 s75, s34, 1
    s_add_u32 s75, s75, s37
    """)
    if int(E("K1RX", "1")):
        a("s_lshr_b32 s47, s2, 1")
        a("s_add_u32 s75, s75, s47")
    if not int(E("K1ROT", "1")): a("s_mov_b32 s75, 0")
    a(f"""
    v_lshrrev_b32 v17, 3, v1
    v_and_b32 v18, 7, v1
    v_lshrrev_b32 v19, 4, v1
    v_xor_b32 v{V_X0}, v18, v19
    v_lshlrev_b32 v{V_X0}, 4, v{V_X0}
    v_lshl_add_u32 v{V_X0}, v17, 10, v{V_X0}
    v_xor_b32 v{V_X1}, 64, v{V_X0}
    v_add_u32 v{V_X1}, 0x2000, v{V_X1}
    """)
    a(f"""
    v_and_b32 v19, 1, v19
    v_lshlrev_b32 v19, 2, v19
    v_xor_b32 v19, v18, v19
    v_lshlrev_b32 v19, 4, v19
    s_movk_i32 s47, 3584
    v_mad_u32_u24 v{V_W0}, v17, s47, v19
    s_movk_i32 s49, 3072
    v_mad_u32_u24 v{V_WQ}, v17, s49, v19
    s_mul_i32 s55, s32, {8*3584}
    s_mul_i32 s56, s32, {8*3072}
    s_lshl_b32 s57, s36, 7
    s_add_u32 s41, s56, s57
    s_cmp_eq_u32 s35, 0
    s_cbranch_scc0 k1_sy0
    """)
    a(f"""
    s_mov_b32 s58, s57
    s_add_u32 s39, s55, s57
    s_mov_b32 s40, s41
    s_add_u32 s41, s41, 2048
    s_mov_b32 s43, {64*3072}
    v_mov_b32 v{V_W1}, v{V_WQ}
    s_waitcnt lgkmcnt(0)
    """)
    srd(a, 28, 18, 19, 512 * 3072)
    a("s_branch k1_sy1")
    a.label("k1_sy0")
    a(f"""
    s_lshl_b32 s58, s36, 8
    s_add_u32 s58, s58, {14*128}
    s_cmp_eq_u32 s36, 7
    s_cselect_b32 s58, {12*128}, s58
    s_add_u32 s39, s55, s58
    s_add_u32 s40, s39, 128
    s_add_u32 s41, s41, 1024
    s_mov_b32 s43, {64*3584}
    v_mov_b32 v{V_W1}, v{V_W0}
    s_waitcnt lgkmcnt(0)
    """)
    srd(a, 28, 20, 21, 512 * 3584)
    a.label("k1_sy1")
    stamp(a, 2)
    srd(a, 4, 16, 17, 2097152)
    srd(a, 8, 20, 21, 512 * 3584)
    srd(a, 64, 18, 19, 512 * 3072)
    P = Pipe()
    for it in dma_list(0): emit_dma(a, it, 0)
    srd(a, 12, 24, 25, WS_SIZE)
    srd(a, 68, 22, 23, 2048 * 4096)
    a(f"""
    s_and_b32 s42, s32, 3
    s_mul_i32 s42, s42, {16*3584}
    s_add_u32 s54, s75, s51
    s_lshl_b32 s47, s36, 6
    s_add_u32 s42, s42, s47
    s_add_u32 s42, s42, 1024
    v_lshrrev_b32 v19, 2, v1
    v_mul_u32_u24 v{V_WS}, 3584, v19
    v_and_b32 v19, 3, v1
    v_lshl_add_u32 v{V_WS}, v19, 4, v{V_WS}
    """)
    a(f"""
    v_and_b32 v{V_N}, 31, v1
    v_lshrrev_b32 v{V_H}, 5, v1
    v_bfe_u32 v19, v1, 1, 3
    v_xor_b32 v19, v19, v{V_H}
    v_lshlrev_b32 v19, 4, v19
    v_lshl_add_u32 v6, v{V_N}, 7, v19
    s_and_b32 s47, s32, 3
    s_lshl_b32 s47, s47, 12
    v_add_u32 v6, s47, v6
    v_xor_b32 v7, 32, v6
    v_xor_b32 v8, 64, v6
    v_xor_b32 v9, 96, v6
    """)
    a(f"""
    v_bfe_u32 v20, v1, 2, 2
    v_lshl_add_u32 v21, v{V_H}, 3, v20
    v_and_b32 v22, 1, v1
    v_bfe_u32 v23, v1, 1, 1
    v_lshl_add_u32 v22, v22, 1, v23
    v_lshlrev_b32 v22, 3, v22
    v_bfe_u32 v23, v1, 4, 1
    v_lshl_add_u32 v22, v23, 5, v22
    v_lshl_add_u32 v{V_RS}, v21, 6, v22
    s_lshl_b32 s47, s51, 6
    v_add_u32 v22, s47, v22
    v_bfe_u32 v23, v1, 3, 1
    v_lshlrev_b32 v23, 6, v23
    v_xor_b32 v22, v22, v23
    v_lshl_add_u32 v{V_RP}, v21, 7, v22
    v_lshlrev_b32 v{V_L}, 4, v1
    s_mov_b32 s26, {f32(GC2)}
    s_mov_b32 s27, {f32(GC1)}
    v_mov_b32 v{V_SUM}, 0
    v_mov_b32 v{P_SUM}, 0
    v_mov_b32 v{P_SUM+1}, 0
    v_mov_b32 v{P_SQ}, 0
    v_mov_b32 v{P_SQ+1}, 0
    s_mov_b32 s52, {f32(QSCALE)}
    """)
    a(f"""
    s_lshl_b32 s60, s36, 2
    s_lshl_b32 s47, s51, 1
    s_add_u32 s60, s60, s47
    s_lshl_b32 s60, s60, 16
    s_lshl_b32 s47, s50, 10
    s_add_u32 s60, s60, s47
    s_add_u32 s62, s60, {VF}
    s_lshl_b32 s47, s35, 21
    s_add_u32 s60, s60, s47
    v_bfe_u32 v{V_V}, v1, 4, 1
    v_lshlrev_b32 v{V_V}, 16, v{V_V}
    v_lshl_add_u32 v{V_V}, v{V_H}, 8, v{V_V}
    v_and_b32 v19, 15, v1
    v_lshl_add_u32 v{V_V}, v19, 4, v{V_V}
    s_lshr_b32 s57, s58, 6
    s_add_u32 s57, s57, s51
    s_lshl_b32 s72, s2, 7
    s_add_u32 s72, s72, {FL}
    s_and_b32 s73, s2, 7
    s_lshl_b32 s73, s73, 5
    s_add_u32 s73, s73, s46
    s_lshl_b32 s73, s73, 3
    s_add_u32 s73, s73, s32
    s_lshl_b32 s73, s73, 12
    s_cmp_ge_u32 s57, 28
    s_cbranch_scc1 k1_sz2
    s_mul_i32 s47, s50, {56*1024}
    s_add_u32 s47, s47, {Z1}
    s_lshl_b32 s61, s57, 11
    s_add_u32 s61, s61, s47
    s_add_u32 s63, s61, 4096
    s_add_u32 s59, s36, 16
    s_lshl_b32 s59, s59, 11
    s_add_u32 s59, s59, s47
    v_mov_b32 v{V_Z0}, v{V_L}
    v_add_u32 v{V_Z1}, 1024, v{V_L}
    s_mov_b32 s74, 0
    s_branch k1_main
    """)
    a.label("k1_sz2")
    a(f"""
    s_lshl_b32 s47, s50, 11
    s_add_u32 s47, s47, {Z2 - 28*131072}
    s_lshl_b32 s61, s57, 17
    s_add_u32 s61, s61, s47
    s_add_u32 s63, s61, 262144
    v_lshlrev_b32 v{V_Z0}, 4, v{V_H}
    v_lshl_add_u32 v{V_Z0}, v{V_N}, 6, v{V_Z0}
    v_add_u32 v{V_Z1}, 32, v{V_Z0}
    s_mov_b32 s74, 1.0
    """)
    a.label("k1_main")
    for st in range(1, LA):
        a("s_barrier")
        for it in dma_list(st): emit_dma(a, it, st)
    if int(E("K1T", "1")):
        a.comment("L2 touch: wave 7 pair-pass weights, wave 6 (X) single weights; rows of chunk rot")
        a(f"""
        s_cmp_lt_u32 s32, 6
        s_cbranch_scc1 k1_td
        s_and_b32 s53, s75, 7
        s_cmp_eq_u32 s32, 7
        s_cbranch_scc0 k1_ts
        s_mul_i32 s45, s53, {64*3072}
        s_sub_u32 s47, s41, s56
        s_add_u32 s45, s45, s47
        v_mul_u32_u24 v{V_T0}, 3072, v1
        buffer_load_dword v{V_T1}, v{V_T0}, s[64:67], s45 offen
        s_branch k1_td
        """)
        a.label("k1_ts")
        a(f"""
        s_cmp_eq_u32 s35, 0
        s_cbranch_scc0 k1_td
        s_mul_i32 s45, s53, {64*3584}
        s_lshl_b32 s47, s36, 6
        s_add_u32 s45, s45, s47
        v_mul_u32_u24 v{V_T0}, 3584, v1
        buffer_load_dword v{V_T1}, v{V_T0}, s[8:11], s45 offen offset:1024
        """)
        a.label("k1_td")
    stamp(a, 3)
    assert KF - QF == 1 << 21 and QF == 0
    run_steps(a, P, steps_phase1(), None)
    a(f"v_lshlrev_b32 v{V_T0}, 7, v{V_N}")
    while P.dmaq:
        it, st = P.dmaq.pop(0); emit_dma(a, it, st)
    a(f"v_add_u32 v{V_RP}, {(0x18000 - P.bank * 65536) & 0xffffffff:#x}, v{V_RP}")
    rdy = 0
    st_qk = [([], f"buffer_store_dwordx4 {{d}}, v{V_L}, s[12:15], s60 offen{SC}"),
             (["s_add_u32 s60, s60, 0x10000"], f"buffer_store_dwordx4 {{d}}, v{V_L}, s[12:15], s60 offen{SC}")]
    st_v = [([], f"buffer_store_dwordx4 {{d}}, v{V_V}, s[12:15], s62 offen{SC}"), ([], f"buffer_store_dwordx4 {{d}}, v{V_V}, s[12:15], s62 offen offset:512{SC}")]
    a("s_cmp_eq_u32 s35, 0")
    a("s_cbranch_scc0 k1_y")
    a("s_cmp_eq_u32 s51, 0")
    a("s_cbranch_scc0 k1_xb")
    def tail(q, Q, acc, st):
        drain(q, Q, 10)
        emit_epi(q, Q, None)
        q("s_nop 7"); q("s_nop 3")
        Q.epi = epi_cvt_store(acc, False, st, 0)
        emit_epi(q, Q, None)
    QA, QB, QY = int(E("QA", "8")), int(E("QB", "6")), int(E("QY", "10"))
    xa = fork(a); XA = P.clone()
    if int(E("XAPRIO", "1")): xa("s_setprio 1")
    XA.epi = epi_cvt_store(ACC[1], True, st_qk, rdy) + epi_gelu(ACC[0], 61, rdy, False)
    post_barrier(xa, XA, a.vm_total - a.single_at)
    run_steps(xa, XA, steps_single(ACC[2]), QA)
    assert not uses(XA.epi, ACC[1])
    XA.epi += epi_gelu(ACC[2], 59, XA.n + D + 2, False)
    run_steps(xa, XA, steps_pair(ACC[1], True), QA)
    tail(xa, XA, ACC[1], st_v)
    stamp(xa, 6); xa("s_endpgm")
    xb = fork(a); XB = P.clone()
    xb.label("k1_xb")
    XB.epi = epi_cvt_store(ACC[1], True, st_qk, rdy) + epi_gelu(ACC[0], 61, rdy, False)
    post_barrier(xb, XB, a.vm_total - a.single_at)
    run_steps(xb, XB, steps_pair(ACC[2], True), QB)
    tail(xb, XB, ACC[2], st_v)
    stamp(xb, 6); xb("s_endpgm")
    y = fork(a); Y = P.clone()
    y.label("k1_y")
    Y.epi = epi_gelu(ACC[0], 61, rdy, True) + epi_gelu(ACC[1], 63, rdy, True)
    post_barrier(y, Y, None)
    run_steps(y, Y, steps_pair(ACC[2], False), QY)
    tail(y, Y, ACC[2], st_qk)
    y(f"""
    v_add_f32 v{V_SUM}, v{P_SUM}, v{P_SUM+1}
    v_add_f32 v{V_SQ}, v{P_SQ}, v{P_SQ+1}
    s_nop 1
    v_permlane32_swap_b32 v{V_SUM}, v{V_SQ}
    v_lshlrev_b32 v21, 7, v{V_N}
    v_lshl_add_u32 v21, v{V_H}, 2, v21
    v_add_f32 v20, v{V_SUM}, v{V_SQ}
    s_lshl_b32 s47, s36, 1
    s_add_u32 s47, s47, s51
    v_mul_f32 v20, s74, v20
    s_lshl_b32 s47, s47, 3
    s_lshl_b32 s46, s50, 12
    s_add_u32 s47, s47, s46
    s_add_u32 s47, s47, {ST}
    buffer_store_dword v20, v21, s[12:15], s47 offen{SC}
    """)
    stamp(y, 6); y.label("k1_exit")
    y("s_endpgm")
    errs = []
    for n, l in {"xa": xa, "xb": xb, "y": y}.items(): errs += check_hazards(a.lines + l.lines, "k1/" + n)
    text = header("k1_kernel") + a.text() + xa.text() + xb.text() + y.text()
    return text, desc("k1_kernel", 256, 128), errs
```

```python
from common import *
from kln import emit_ln
import kout

K2_GRID = 512
E = os.environ.get
FUSE3 = int(E("FUSE3", "1"))
K2_LDS = 81920 if FUSE3 else 73728
OSC = " sc1" if FUSE3 else ""
FUSELN = int(E("FUSELN", "1"))
APRIO = int(E("APRIO", "0"))
GPRIO = int(E("GPRIO", "0"))
LPRIO = int(E("LPRIO", "2"))
PDIST = int(E("PDIST", "8"))
WT0 = int(E("WT0", "2"))
ZSC = " sc1" if int(E("ZSC", "1")) else ""

QFR = [4, 8]
KB = [12, 16]
VB = [20, 28]
PB = 36
SB = [48, 64]
OB = [80, 96]
A_K, A_V, A_DMA, V_G = 44, 45, 46, 47
T0, T1 = 112, 113
STAND = "-4.0"
ATV = E("ATV", "")


def mf(d, A, B, C):
    return f"v_mfma_f32_32x32x16_bf16 {vr(d,16)}, {vr(A,4)}, {vr(B,4)}, {C}"


def softmax_pv2(a, S, V, O):
    for r in range(8): a(f"v_exp_f32 v{S+r}, v{S+r}")
    for q in range(4): a(f"v_cvt_pk_bf16_f32 v{PB+q}, v{S+2*q}, v{S+2*q+1}")
    a(f"v_exp_f32 v{S+8}, v{S+8}")
    a(f"v_exp_f32 v{S+9}, v{S+9}")
    a(mf(O, V, PB, vr(O, 16)))
    for r in range(10, 16): a(f"v_exp_f32 v{S+r}, v{S+r}")
    for q in range(4): a(f"v_cvt_pk_bf16_f32 v{PB+4+q}, v{S+8+2*q}, v{S+8+2*q+1}")
    a("s_nop 1")
    a(mf(O, V + 4, PB + 4, vr(O, 16)))


def rdK(a, kb):
    a.ds(f"ds_read_b128 {vr(KB[kb%2],4)}, v{A_K} offset:{(kb%8)*1024}", ("k", kb % 8))


def rdV(a, kb):
    a("s_mov_b64 exec, s[36:37]")
    a.ds(f"ds_read_b128 {vr(VB[kb%2],4)}, v{A_V} offset:{(kb%8)*1024}", ("v", kb % 8))
    a.ds(f"ds_read_b128 {vr(VB[kb%2]+4,4)}, v{A_V} offset:{(kb%8)*1024+512}", ("v", kb % 8))
    a("s_mov_b64 exec, -1")


def attn_dma(a, tag):
    a("s_mov_b32 m0, s42")
    a("s_nop 0")
    a.vm(f"buffer_load_dwordx4 v{A_DMA}, s[12:15], s40 offen lds", tag)
    a.vm(f"buffer_load_dwordx4 v{A_DMA}, s[12:15], s40 offen offset:1024 lds", tag)
    a("s_add_u32 m0, s42, 16384")
    a("s_add_u32 s40, s40, 16384")
    a.vm(f"buffer_load_dwordx4 v{A_DMA}, s[12:15], s41 offen lds", tag)
    a.vm(f"buffer_load_dwordx4 v{A_DMA}, s[12:15], s41 offen offset:1024 lds", tag)
    a("s_add_u32 s41, s41, 16384")
    a("s_xor_b32 s42, s42, 32768")


def attn_unit(a, u):
    kb, qt = u >> 1, u & 1
    X, Y = SB[u % 2], SB[(u + 1) % 2]
    kp, kn = (u - 1) >> 1, (u + 1) >> 1
    e = lambda i: a(f"v_exp_f32 v{X+i}, v{X+i}")
    if "e" in ATV: e = lambda i: a(f"v_exp_f32 v{T0}, v{T1}")
    c = lambda j: a(f"v_cvt_pk_bf16_f32 v{PB+j}, v{X+2*j}, v{X+2*j+1}")
    if "c" in ATV: c = lambda j: a(f"v_cvt_pk_bf16_f32 v{T0}, v{T1}, v{T1}")
    mf = globals()["mf"]
    if "p" in ATV or "s" in ATV:
        def mf(d, A, B, C):
            if ("p" in ATV and C != STAND) or ("s" in ATV and C == STAND): return f"v_max_f32 v{T0}, v{T1}, v{T1}\nv_max_f32 v{T0}, v{T1}, v{T1}"
            return globals()["mf"](d, A, B, C)
    e(0); e(1)
    a(mf(OB[1 - qt], VB[kp % 2] + 4, PB + 4, vr(OB[1 - qt], 16)))
    e(2)
    if u == 14:
        a(f"v_xor_b32 v{A_K}, 0x8000, v{A_K}")
        a("s_waitcnt vmcnt(0) lgkmcnt(0)")
        a.lds_q = []
        a("s_barrier")
    if qt == 0: rdK(a, kb + 1)
    else: rdV(a, kb + 1)
    e(3); c(0); e(4)
    if u == 14:
        a("s_cmp_lt_u32 s43, 2")
        a("s_cbranch_scc0 k2_anodma")
        attn_dma(a, "cx")
        a.label("k2_anodma")
        a(f"v_xor_b32 v{A_V}, 0x8000, v{A_V}")
    e(5); c(1); e(6)
    a.wait(lds=[("k", kn % 8)])
    e(7)
    a(mf(Y, KB[kn % 2], QFR[1 - qt], STAND))
    c(2); c(3); e(8); e(9); e(10)
    a.wait(lds=[("v", kb % 8)])
    e(11); c(4)
    a(mf(OB[qt], VB[kb % 2], PB, vr(OB[qt], 16)))
    e(12); e(13); c(5); e(14); e(15); c(6); c(7)


def attention(a):
    a(f"""
    s_lshr_b32 s35, s34, 3
    s_lshl_b32 s44, s33, 2
    s_add_u32 s35, s35, s44
    s_lshl_b32 s39, s35, 16
    s_lshl_b32 s42, s32, 11
    s_add_u32 s40, s39, s42
    s_add_u32 s41, s40, {VF}
    s_add_u32 s40, s40, {KF}
    v_lshlrev_b32 v{A_DMA}, 4, v1
    """)
    attn_dma(a, "c0")
    a(f"""
    s_and_b32 s38, s34, 7
    s_lshl_b32 s38, s38, 2
    s_and_b32 s44, s32, 3
    s_add_u32 s38, s38, s44
    s_lshl_b32 s38, s38, 1
    s_lshl_b32 s44, s38, 10
    s_add_u32 s44, s44, s39
    s_add_u32 s44, s44, {QF}
    s_lshr_b32 s48, s32, 2
    s_add_u32 s38, s38, s48
    """)
    a.vm(f"buffer_load_dwordx4 {vr(QFR[0],4)}, v{A_DMA}, s[12:15], s44 offen", "c0")
    a.vm(f"buffer_load_dwordx4 {vr(QFR[1],4)}, v{A_DMA}, s[12:15], s44 offen offset:1024", "c0")
    attn_dma(a, "c1")
    a(f"""
    s_mov_b32 s36, 0x0000ffff
    s_mov_b32 s37, 0x0000ffff
    s_lshl_b32 s44, s48, 13
    v_add_u32 v{A_K}, s44, v{A_DMA}
    v_and_b32 v{T1}, 15, v2
    v_lshlrev_b32 v{T1}, 4, v{T1}
    v_lshl_add_u32 v{A_V}, v3, 8, v{T1}
    s_add_u32 s44, s44, 16384
    v_add_u32 v{A_V}, s44, v{A_V}
    """)
    for r in range(16): a(f"v_mov_b32 v{VB[0]+r}, 0")
    a("s_mov_b32 exec_lo, 0x00110000"); a("s_mov_b32 exec_hi, 0x00110000")
    for r in range(16): a(f"v_mov_b32 v{VB[0]+r}, 0x3f803f80")
    a("s_mov_b64 exec, -1")
    if APRIO: a(f"s_setprio {APRIO}")
    for r in range(32): a(f"v_mov_b32 v{OB[0]+r}, 0")
    for r in range(8): a(f"v_mov_b32 v{PB+r}, 0")
    a("s_mov_b32 s43, 0")
    a.wait(vm=["c0"])
    a("s_barrier")
    stamp(a, 0)
    rdK(a, 0); rdV(a, 0)
    a.wait(lds=[("k", 0)])
    a(mf(SB[0], KB[0], QFR[0], STAND))
    a("s_nop 7"); a("s_nop 3")
    q0 = list(a.lds_q)
    a.raw(".p2align 3")
    a.label("k2_aloop")
    for u in range(16): attn_unit(a, u)
    assert a.lds_q == q0, (a.lds_q, q0)
    a("s_add_u32 s43, s43, 1")
    a("s_cmp_lt_u32 s43, 4")
    a("s_cbranch_scc1 k2_aloop")
    stamp(a, 1)
    a(mf(OB[1], VB[1] + 4, PB + 4, vr(OB[1], 16)))
    a(f"""
    s_and_b32 s44, s32, 3
    s_lshl_b32 s44, s44, 1
    s_add_u32 s44, s44, s48
    s_mul_i32 s45, s44, 2304
    s_xor_b32 s44, s44, 1
    s_mul_i32 s44, s44, 2304
    v_add_u32 v{A_K}, s45, v{A_DMA}
    v_add_u32 v{T0}, s44, v{A_DMA}
    v_lshlrev_b32 v{T1}, 2, v1
    v_add_u32 v{PB}, s45, v{T1}
    v_add_u32 v{T1}, s44, v{T1}
    s_waitcnt lgkmcnt(0)
    s_barrier
    s_cmp_eq_u32 s48, 0
    s_cbranch_scc1 k2_ax0
    """)
    a.lds_q = []
    O = OB[0]
    a(f"ds_write_b128 v{A_K}, {vr(OB[0],4)}")
    a(f"ds_write_b128 v{A_K}, {vr(OB[0]+4,4)} offset:1024")
    a(f"ds_write_b32 v{PB}, v{OB[0]+8} offset:2048")
    a("s_nop 1")
    for r in range(9): a(f"v_mov_b32 v{O+r}, v{OB[1]+r}")
    for r in range(4): a(f"v_mov_b32 v{QFR[0]+r}, v{QFR[1]+r}")
    a("s_branch k2_ax1")
    a.label("k2_ax0")
    a(f"ds_write_b128 v{A_K}, {vr(OB[1],4)}")
    a(f"ds_write_b128 v{A_K}, {vr(OB[1]+4,4)} offset:1024")
    a(f"ds_write_b32 v{PB}, v{OB[1]+8} offset:2048")
    a.label("k2_ax1")
    a(f"""
    s_waitcnt lgkmcnt(0)
    s_barrier
    ds_read_b128 {vr(SB[0],4)}, v{T0}
    ds_read_b128 {vr(SB[0]+4,4)}, v{T0} offset:1024
    ds_read_b32 v{SB[0]+8}, v{T1} offset:2048
    s_waitcnt lgkmcnt(0)
    """)
    for r in range(9): a(f"v_add_f32 v{O+r}, v{O+r}, v{SB[0]+r}")
    a(f"v_add_f32_e64 v{T0}, |v{O}|, |v{O+1}|")
    for r in range(2, 8): a(f"v_add_f32_e64 v{T0}, v{T0}, |v{O+r}|")
    a(f"""
    v_cmp_gt_f32 vcc, 0x7f800000, v{T0}
    s_mov_b64 s[46:47], vcc
    v_cmp_lt_f32 vcc, {f32(2.0**-40)}, v{O+8}
    s_and_b64 s[46:47], s[46:47], vcc
    v_cmp_gt_f32 vcc, {f32(2.0**40)}, v{O+8}
    s_and_b64 s[46:47], s[46:47], vcc
    s_cmp_eq_u64 s[46:47], -1
    s_cbranch_scc0 {'k2_aepi' if ATV else 'k2_afall'}
    """)
    a.label("k2_aepi")
    a(f"v_rcp_f32 v{T0}, v{O+8}")
    a(f"s_mul_i32 s44, s38, {88*1024}")
    a(f"s_lshl_b32 s45, s35, 10")
    for r in range(8): a(f"v_mul_f32 v{O+r}, v{O+r}, v{T0}")
    a(f"s_add_u32 s44, s44, s45")
    a(f"s_add_u32 s44, s44, {OU}")
    for q in range(4): a(f"v_cvt_pk_bf16_f32 v{PB+q}, v{O+2*q}, v{O+2*q+1}")
    a(f"buffer_store_dwordx4 {vr(PB,4)}, v{A_DMA}, s[12:15], s44 offen{OSC}")
    if FUSE3:
        a(f"""
        s_lshr_b32 s44, s38, 1
        s_lshl_b32 s44, s44, 8
        s_lshl_b32 s45, s38, 7
        s_add_u32 s44, s44, s45
        s_lshl_b32 s45, s35, 2
        s_add_u32 s44, s44, s45
        s_add_u32 s44, s44, {kout.FL2}
        v_mov_b32 v{T0}, 1
        v_mov_b32 v{T1}, 0
        s_mov_b64 exec, 1
        s_waitcnt vmcnt(0)
        buffer_store_dword v{T0}, v{T1}, s[12:15], s44 offen sc1
        """)
    a("s_endpgm")
    CB = SB[1]
    a.label("k2_afall")
    a(f"""
    s_add_u32 s40, s39, {KF}
    s_add_u32 s41, s39, {VF}
    s_mov_b32 s43, 0
    v_mov_b32 v{T0}, 0xff800000
    v_and_b32 v{A_V}, 0x1ff, v{A_V}
    """)
    a.label("k2_af1")
    a(f"""
    buffer_load_dwordx4 {vr(KB[0],4)}, v{A_DMA}, s[12:15], s40 offen
    s_add_u32 s40, s40, 1024
    s_waitcnt vmcnt(0)
    v_mfma_f32_32x32x16_bf16 {vr(SB[0],16)}, {vr(KB[0],4)}, {vr(QFR[0],4)}, 0
    s_nop 7
    s_nop 3
    """)
    for r in range(0, 16, 2): a(f"v_max3_f32 v{T0}, v{T0}, v{SB[0]+r}, v{SB[0]+r+1}")
    a(f"""
    s_add_u32 s43, s43, 1
    s_cmp_lt_u32 s43, 64
    s_cbranch_scc1 k2_af1
    v_mov_b32 v{T1}, v{T0}
    s_nop 1
    v_permlane32_swap_b32 v{T0}, v{T1}
    s_nop 1
    v_max_f32 v{T0}, v{T0}, v{T1}
    """)
    for r in range(16): a(f"v_sub_f32 v{CB+r}, 0, v{T0}")
    for r in range(16): a(f"v_mov_b32 v{O+r}, 0")
    a(f"s_add_u32 s40, s39, {KF}")
    a("s_mov_b32 s43, 0")
    a.label("k2_af2")
    a(f"""
    buffer_load_dwordx4 {vr(KB[0],4)}, v{A_DMA}, s[12:15], s40 offen
    s_mov_b64 exec, s[36:37]
    buffer_load_dwordx4 {vr(VB[0],4)}, v{A_V}, s[12:15], s41 offen
    buffer_load_dwordx4 {vr(VB[0]+4,4)}, v{A_V}, s[12:15], s41 offen offset:512
    s_mov_b64 exec, -1
    s_add_u32 s40, s40, 1024
    s_add_u32 s41, s41, 1024
    s_waitcnt vmcnt(0)
    v_mfma_f32_32x32x16_bf16 {vr(SB[0],16)}, {vr(KB[0],4)}, {vr(QFR[0],4)}, {vr(CB,16)}
    s_nop 7
    s_nop 3
    """)
    softmax_pv2(a, SB[0], VB[0], O)
    a("""
    s_add_u32 s43, s43, 1
    s_cmp_lt_u32 s43, 64
    s_nop 7
    s_nop 3
    s_cbranch_scc1 k2_af2
    s_branch k2_aepi
    """)


GST = 24576
GPACE = [x for x in E("GPACE", "").split(";") if x]
NSTG = 32
G_ACC = [64, 80]
G_FB = [16, 40]
G_Z1 = 96
G_AZ, G_AW = 4, 5
G_DZ, G_B, G_G = 9, 10, 12


def gemm_reads(a, slot, half, tag):
    fb = G_FB[half]
    for e in range(2):
        j = 2 * half + e
        o = slot * GST + 16 * j * 64
        f = fb + 12 * e
        a.ds(f"ds_read_b64_tr_b16 {vr(f,2)}, v{G_AZ} offset:{o}", tag)
        a.ds(f"ds_read_b64_tr_b16 {vr(f+2,2)}, v{G_AZ} offset:{o+256}", tag)
        a.ds(f"ds_read_b128 {vr(f+4,4)}, v{G_AW+j} offset:{slot*GST}", tag)
        a.ds(f"ds_read_b128 {vr(f+8,4)}, v{G_AW+j} offset:{slot*GST+4096}", tag)


def gemm_mfma(a, half):
    fb = G_FB[half]
    for e in range(2):
        f = fb + 12 * e
        for t in range(2):
            a(mf(G_ACC[t], f, f + 4 + 4 * t, vr(G_ACC[t], 16)))
            for x in GPACE: a(x)


def gemm_stage(a, slot):
    a("s_waitcnt lgkmcnt(0)")
    a.lds_q = []
    a("s_barrier")
    gemm_reads(a, slot, 0, "h0")
    gemm_mfma(a, 1)
    gemm_reads(a, slot, 1, "h1")
    a.wait(lds=["h0"])
    gemm_mfma(a, 0)


def gemm_compute(a):
    a(f"""
    v_bfe_u32 v13, v1, 2, 2
    v_lshl_add_u32 v13, v3, 3, v13
    v_and_b32 v14, 1, v1
    v_bfe_u32 v15, v1, 1, 1
    v_lshl_add_u32 v14, v14, 1, v15
    v_lshlrev_b32 v14, 3, v14
    v_bfe_u32 v15, v1, 4, 1
    v_lshl_add_u32 v14, v15, 5, v14
    v_lshl_add_u32 v{G_AZ}, v13, 6, v14
    s_lshl_b32 s45, s32, 12
    v_add_u32 v{G_AZ}, s45, v{G_AZ}
    v_bfe_u32 v13, v1, 1, 3
    v_xor_b32 v13, v13, v3
    v_lshlrev_b32 v13, 4, v13
    v_lshl_add_u32 v{G_AW}, v2, 7, v13
    v_add_u32 v{G_AW}, 16384, v{G_AW}
    v_xor_b32 v{G_AW+1}, 32, v{G_AW}
    v_xor_b32 v{G_AW+2}, 64, v{G_AW}
    v_xor_b32 v{G_AW+3}, 96, v{G_AW}
    v_lshlrev_b32 v{G_DZ}, 4, v1
    s_lshl_b32 s46, s38, 1
    s_lshl_b32 s47, s35, 2
    s_add_u32 s47, s47, s32
    s_mul_i32 s48, s46, {56*1024}
    s_lshl_b32 s49, s47, 11
    s_add_u32 s48, s48, s49
    s_add_u32 s48, s48, {Z1}
    s_add_u32 s54, s48, {56*1024}
    s_mul_i32 s50, s46, {88*1024}
    s_add_u32 s50, s50, s49
    s_add_u32 s50, s50, {OU + 32*1024}
    s_add_u32 s55, s50, {88*1024}
    s_lshl_b32 s52, s46, 6
    v_lshlrev_b32 v15, 1, v2
    """)
    for r in range(32): a(f"v_mov_b32 v{G_ACC[0]+r}, 0")
    for r in range(24): a(f"v_mov_b32 v{G_FB[1]+r}, 0")
    a(f"s_setprio {GPRIO}")
    if FUSELN: a("s_barrier")
    gemm_stage(a, 0)
    stamp(a, 0)
    gemm_stage(a, 1)
    a("s_mov_b32 s53, 0")
    a.raw(".p2align 3")
    a.label("k2_gloop")
    for s in (2, 0, 1): gemm_stage(a, s)
    a("s_add_u32 s53, s53, 1")
    a("s_cmp_lt_u32 s53, 9")
    a("s_cbranch_scc1 k2_gloop")
    for t in range(2):
        s = (48, 54)[t]
        a(f"buffer_load_dwordx4 {vr(G_Z1+8*t,4)}, v{G_DZ}, s[12:15], s{s} offen")
        a(f"buffer_load_dwordx4 {vr(G_Z1+8*t+4,4)}, v{G_DZ}, s[12:15], s{s} offen offset:1024")
        a(f"buffer_load_ushort v{G_B+t}, v15, s[28:31], s52 offen offset:{64*t}")
    for s in (2, 0, 1): gemm_stage(a, s)
    stamp(a, 1)
    a("s_waitcnt lgkmcnt(0)")
    if FUSE3:
        a("s_barrier")
        a(f"s_setprio {kout.OPRIO}")
    gemm_mfma(a, 1)
    a("s_waitcnt vmcnt(0)")
    for t in range(2):
        a(f"v_lshlrev_b32 v{G_B+t}, 16, v{G_B+t}")
    T = 16
    for t in range(2):
        z = G_Z1 + 8 * t
        for q in range(8):
            a(f"v_lshlrev_b32 v{T+2*q}, 16, v{z+q}")
            a(f"v_and_b32 v{T+2*q+1}, 0xffff0000, v{z+q}")
        for r in range(16): a(f"v_add_f32 v{G_ACC[t]+r}, v{G_ACC[t]+r}, v{G_B+t}")
        for r in range(16): a(f"v_mul_f32 v{G_ACC[t]+r}, v{G_ACC[t]+r}, v{T+r}")
        for q in range(8): a(f"v_cvt_pk_bf16_f32 v{z+q}, v{G_ACC[t]+2*q}, v{G_ACC[t]+2*q+1}")
        s = (50, 55)[t]
        a(f"buffer_store_dwordx4 {vr(z,4)}, v{G_DZ}, s[12:15], s{s} offen{OSC}")
        a(f"buffer_store_dwordx4 {vr(z+4,4)}, v{G_DZ}, s[12:15], s{s} offen offset:1024{OSC}")
    if FUSE3:
        a("s_waitcnt vmcnt(0)")
        a("s_branch k2_out1")
    else: a("s_endpgm")


def loader_z(a):
    a(f"""
    s_sub_u32 s44, s32, 4
    s_lshl_b32 s44, s44, 1
    s_lshl_b32 s42, s44, 12
    s_lshl_b32 s45, s35, 2
    s_add_u32 s44, s44, s45
    s_lshl_b32 s40, s44, 17
    s_add_u32 s40, s40, {Z2N}
    s_add_u32 s41, s40, 131072
    v_lshlrev_b32 v{G_DZ}, 4, v1
    s_lshl_b32 s43, s62, 12
    """)
    a(f"s_setprio {LPRIO}")
    def dma(slot):
        for i, s in enumerate((40, 41)):
            a(f"s_add_u32 m0, s42, {slot*GST + 4096*i}")
            a(f"s_add_u32 s45, s{s}, s43")
            for p in range(4):
                a(f"buffer_load_dwordx4 v{G_DZ}, s[12:15], s45 offen offset:{1024*p}{ZSC} lds")
        a("s_add_u32 s43, s43, 4096")
        a(f"s_and_b32 s43, s43, {E('ZMASK', '0x1ffff')}")
    if FUSELN: a("s_barrier")
    loader_loop(a, dma, "k2_lz", False)


def loader_loop(a, dma, lab, b2_after):
    dma(0); dma(1)
    if b2_after: a("s_barrier")
    a("s_mov_b32 s53, 0")
    a.label(lab)
    for s in (0, 1, 2):
        a("s_waitcnt vmcnt(8)")
        a("s_barrier")
        dma((s + 2) % 3)
    a("s_add_u32 s53, s53, 1")
    a("s_cmp_lt_u32 s53, 10")
    a(f"s_cbranch_scc1 {lab}")
    a("s_waitcnt vmcnt(8)")
    a("s_barrier")
    a("s_waitcnt vmcnt(0)")
    a("s_barrier")
    lend(a)


def lend(a):
    if FUSE3:
        a("s_barrier")
        a("s_branch k2_out0")
    else: a("s_endpgm")


def loader_w(a):
    a(f"""
    s_lshl_b32 s42, s38, 18
    s_lshl_b32 s43, s62, 7
    s_add_u32 s40, s42, s43
    v_lshrrev_b32 v13, 3, v1
    v_and_b32 v14, 7, v1
    v_lshrrev_b32 v15, 4, v1
    v_xor_b32 v14, v14, v15
    v_lshlrev_b32 v14, 4, v14
    v_lshl_add_u32 v4, v13, 12, v14
    v_xor_b32 v5, 64, v4
    v_add_u32 v5, {32768-1024}, v5
    """)
    a(f"s_setprio {LPRIO}")
    def dma(slot):
        for h in range(2):
            a(f"s_mov_b32 m0, {slot*GST + 16384 + 4096*h}")
            for q in range(2):
                a(f"s_add_u32 s41, s40, {(4*h+2*q)*32768 - 2048*q}")
                a(f"buffer_load_dwordx4 v4, s[8:11], s41 offen offset:{2048*q} lds")
                a(f"buffer_load_dwordx4 v5, s[8:11], s41 offen offset:{2048*q+1024} lds")
        a("s_add_u32 s43, s43, 128")
        a(f"s_and_b32 s43, s43, {E('WMASK', '0xfff')}")
        a("s_add_u32 s40, s42, s43")
    loader_loop(a, dma, "k2_lw", FUSELN)


def toucher(a):
    a(f"""
    s_lshl_b32 s40, s35, 19
    s_add_u32 s40, s40, {Z2N}
    s_lshl_b32 s41, s38, 18
    s_and_b32 s46, s38, 3
    v_lshlrev_b32 v4, 17, v3
    v_lshl_add_u32 v4, v2, 7, v4
    v_lshlrev_b32 v5, 12, v1
    s_lshl_b32 s47, s35, 7
    s_add_u32 s47, s47, s41
    """)
    a(f"s_setprio {LPRIO}")
    stamp(a, 0)
    for i in range(5 if int(E("WTOUCH", "0")) else 0):
        if i == 4:
            a("s_cmp_lt_u32 s35, 4")
            a("s_cbranch_scc0 k2_tw_done")
        a(f"buffer_load_dword v10, v5, s[8:11], s47 offen offset:{896*i}")
    a.label("k2_tw_done")
    for st in range(2, WT0):
        a(f"s_cmp_eq_u32 s35, {st % 7}")
        a(f"s_cbranch_scc0 k2_tw{st}")
        a(f"buffer_load_dword v10, v5, s[8:11], s41 offen offset:{128*st}")
        a.label(f"k2_tw{st}")
    if FUSELN:
        a(f"""
        s_lshl_b32 s44, s35, 12
        s_add_u32 s44, s44, {FL}
        s_lshl_b32 s45, s38, 7
        s_add_u32 s45, s45, s44
        v_mov_b32 v6, 1
        v_mov_b32 v7, 0
        v_lshlrev_b32 v8, 7, v2
        s_mov_b64 exec, 1
        buffer_store_dword v6, v7, s[12:15], s45 offen sc1
        s_mov_b64 exec, -1
        s_mov_b32 s53, 0
        """)
        a.label("k2_poll")
        a(f"""
        buffer_load_dword v9, v8, s[12:15], s44 offen sc1
        s_add_u32 s53, s53, 1
        s_waitcnt vmcnt(0)
        v_cmp_ne_u32 vcc, 1, v9
        s_cmp_ge_u32 s53, 0x40000
        s_cbranch_scc1 k2_poll_done
        s_cbranch_vccz k2_poll_done
        s_sleep {E("PSLEEP", "2")}
        s_branch k2_poll
        """)
        a.label("k2_poll_done")
        stamp(a, 1)
        a("s_barrier")
    nb = 0
    a("s_sub_u32 s46, s46, s62")
    a("s_and_b32 s46, s46, 3")
    for st in range(2, NSTG):
        if st >= PDIST + 2:
            a("s_barrier"); nb += 1
        if not int(E("ZT", "1")): continue
        a(f"s_cmp_eq_u32 s46, {st & 3}")
        a(f"s_cbranch_scc0 k2_tz{st}")
        a(f"s_add_u32 s44, s62, {st}")
        a(f"s_and_b32 s44, s44, 31")
        a(f"s_lshl_b32 s44, s44, 12")
        a(f"s_add_u32 s44, s44, s40")
        a(f"s_add_u32 s45, s44, 262144")
        a("buffer_load_dword v10, v4, s[12:15], s44 offen")
        a("buffer_load_dword v11, v4, s[12:15], s45 offen")
        a.label(f"k2_tz{st}")
    if int(E("K2W3", "1")):
        a.comment("prefetch K3 weights into this XCD's L2")
        a("""
        s_load_dwordx2 s[16:17], s[0:1], 16
        s_load_dwordx2 s[18:19], s[0:1], 56
        s_lshl_b32 s44, s34, 15
        s_mul_i32 s45, s34, 24576
        v_lshlrev_b32 v4, 7, v1
        v_add_u32 v5, s45, v4
        s_waitcnt lgkmcnt(0)
        """)
        srd(a, 8, 16, 17, 512 * 1024)
        srd(a, 28, 18, 19, 896 * 1024)
        for i in range(4):
            a(f"buffer_load_dword v10, v4, s[28:31], s44 offen")
            a(f"s_add_u32 s44, s44, 8192")
        for i in range(3):
            a(f"buffer_load_dword v10, v5, s[8:11], 0 offen")
            a(f"v_add_u32 v5, 8192, v5")
    for i in range(NSTG - nb): a("s_barrier")
    lend(a)


def gemm(a):
    a(f"""
    s_mul_i32 s44, s34, 37
    s_lshr_b32 s44, s44, 8
    s_mul_i32 s45, s44, 7
    s_sub_u32 s35, s34, s45
    s_lshl_b32 s38, s33, 2
    s_add_u32 s38, s38, s44
    """)
    a(f"""
    s_and_b32 s62, s38, 3
    s_mul_i32 s62, s62, {int(E("RT", "1"))}
    s_mul_i32 s44, s35, {int(E("RF", "0"))}
    s_add_u32 s62, s62, s44
    s_and_b32 s62, s62, 31
    """)
    if FUSELN:
        if int(E("LNPRIO", "3")): a("s_setprio " + E("LNPRIO", "3"))
        emit_ln(a, 12, 35, 38, 32, 1, 4, 40, " sc1")
        a("s_waitcnt vmcnt(0)")
        a.vm_q = []
        a("s_barrier")
    a("s_cmp_ge_u32 s32, 4")
    a("s_cbranch_scc1 k2_gld")
    c = fork(a); gemm_compute(c)
    l = fork(a)
    l.label("k2_gld")
    l("s_cmp_ge_u32 s32, 6")
    l("s_cbranch_scc1 k2_gld2")
    lz = fork(l); loader_z(lz)
    l2 = fork(l)
    l2.label("k2_gld2")
    l2("s_cmp_eq_u32 s32, 6")
    l2("s_cbranch_scc0 k2_gld3")
    lw = fork(l2); loader_w(lw)
    t = fork(l2)
    t.label("k2_gld3")
    toucher(t)
    return [c, l, lz, l2, lw, t]


def gate(a):
    a.label("k2_gate")
    a(f"""
    s_load_dwordx2 s[16:17], s[0:1], 0
    s_load_dwordx2 s[18:19], s[0:1], 64
    s_setprio 3
    s_lshl_b32 s38, s33, 2
    s_add_u32 s38, s38, s34
    s_sub_u32 s38, s38, 28
    s_lshl_b32 s38, s38, 3
    s_add_u32 s38, s38, s32
    s_lshl_b32 s40, s38, 13
    s_lshl_b32 s41, s38, 5
    s_add_u32 s41, s41, {G}
    v_lshlrev_b32 v4, 4, v1
    s_add_u32 s42, s40, 4096
    s_waitcnt lgkmcnt(0)
    """)
    srd(a, 8, 16, 17, 2097152)
    srd(a, 28, 18, 19, 1024)
    a("buffer_load_dwordx4 v[8:11], v4, s[28:31], 0 offen")
    for r in range(8):
        a(f"buffer_load_dwordx4 {vr(16+4*r,4)}, v4, s[8:11], s{40 if r < 4 else 42} offen offset:{1024*(r%4)}")
    a("s_waitcnt vmcnt(0)")
    for i in range(4):
        for r in range(8):
            a(f"v_dot2_f32_bf16 v{48+r}, v{16+4*r+i}, v{8+i}, {'0' if i == 0 else f'v{48+r}'}")
    for ctl in ("quad_perm:[1,0,3,2]", "quad_perm:[2,3,0,1]", "row_half_mirror", "row_mirror"):
        a("s_nop 1")
        for r in range(8): a(f"v_add_f32_dpp v{56+r}, v{48+r}, v{48+r} {ctl} row_mask:0xf bank_mask:0xf")
        for r in range(8): a(f"v_mov_b32 v{48+r}, v{56+r}")
    a("s_nop 1")
    for r in range(8):
        for q in range(4): a(f"v_readlane_b32 s{44+q}, v{48+r}, {16*q}")
        a("s_nop 1")
        a(f"v_mov_b32 v{56+r}, s44")
        for q in range(1, 4): a(f"v_add_f32 v{56+r}, s{44+q}, v{56+r}")
    for r in range(8): a(f"v_mul_f32 v{56+r}, {f32(-LOG2E)}, v{56+r}")
    for r in range(8): a(f"v_exp_f32 v{56+r}, v{56+r}")
    for r in range(8): a(f"v_add_f32 v{56+r}, 1.0, v{56+r}")
    for r in range(8): a(f"v_rcp_f32 v{56+r}, v{56+r}")
    a("""
    v_mov_b32 v4, 0
    s_mov_b64 exec, 1
    """)
    a(f"buffer_store_dwordx4 v[56:59], v4, s[12:15], s41 offen{OSC}")
    a(f"buffer_store_dwordx4 v[60:63], v4, s[12:15], s41 offen offset:16{OSC}")
    if FUSE3:
        a("""
        s_mov_b64 exec, -1
        s_mov_b32 s35, 7
        s_lshr_b32 s38, s38, 3
        s_cmp_ge_u32 s32, 4
        s_cbranch_scc1 k2_out0
        s_waitcnt vmcnt(0)
        s_branch k2_out1
        """)


def k2():
    a = Asm()
    a(f"""
    s_cmp_ge_u32 s2, {K2_GRID}
    s_cbranch_scc1 k2_exit
    s_load_dwordx2 s[24:25], s[0:1], 88
    s_load_dwordx4 s[16:19], s[0:1], 40
    v_and_b32 v1, 63, v0
    v_lshrrev_b32 v4, 6, v0
    v_and_b32 v2, 31, v0
    v_readfirstlane_b32 s32, v4
    v_bfe_u32 v3, v0, 5, 1
    s_and_b32 s33, s2, 7
    s_lshr_b32 s44, s2, 3
    s_and_b32 s34, s44, 31
    s_waitcnt lgkmcnt(0)
    """)
    srd(a, 12, 24, 25, WS_SIZE)
    a("s_cmp_lt_u32 s44, 32")
    a("s_cbranch_scc0 k2_gemm")
    at = fork(a)
    if E("NOATT"): at("s_endpgm")
    attention(at)
    g = fork(a)
    g.label("k2_gemm")
    if FUSE3: kout.out_srds(g)
    g("s_cmp_ge_u32 s34, 28")
    g("s_cbranch_scc1 k2_gate")
    if E("NOGEMM"): g("s_endpgm")
    srd(g, 8, 16, 17, 2048 * 4096)
    srd(g, 28, 18, 19, 4096)
    c, l, lz, l2, lw, t = gemm(g)
    x = Asm()
    gate(x)
    x.label("k2_exit")
    x("s_endpgm")
    def loopdup(lines, lab):
        i = lines.index(lab + ":")
        j = max(k for k, l in enumerate(lines) if l.strip().endswith(" " + lab))
        return lines[i:j + 1] * 2
    errs = check_hazards(a.lines + at.lines, "k2/attn") + check_hazards(x.lines, "k2/gate")
    for nm, p in (("c", [c]), ("lz", [l, lz]), ("lw", [l, l2, lw]), ("t", [l, l2, t])):
        errs += check_hazards(a.lines + g.lines + sum((q.lines for q in p), []), "k2/g" + nm)
    for lab in ("k2_aloop", "k2_af1", "k2_af2"): errs += check_hazards(loopdup(at.lines, lab), "k2/" + lab)
    errs += check_hazards(loopdup(c.lines, "k2_gloop"), "k2/gloop")
    errs += check_hazards(loopdup(lz.lines, "k2_lz"), "k2/lz") + check_hazards(loopdup(lw.lines, "k2_lw"), "k2/lw")
    ot = ""
    if FUSE3:
        ot, e2 = kout.out_phase()
        errs += e2
    return header("k2_kernel") + "".join(q.text() for q in (a, at, g, c, l, lz, l2, lw, t, x)) + ot, desc("k2_kernel", 120, 120), errs
```

```python
from common import *
E = os.environ.get
FL2 = FL + 0x8000
OPRIO = int(E("OPRIO", "2"))
V_B, V_D, V_W, V_G, V_G1, V_O, V_P = 4, 5, 6, 7, 8, 9, 10
WF = [12, 16, 20]
ACU, ACO = 24, 40
FR = 56
XCH = 65536


def poll(a, lab, vaddr, soff, mask, expect=1, srd_="s[12:15]", stag=8, limit=0x20000):
    a(f"""
    s_mov_b64 exec, {mask}
    buffer_load_dword v{V_P}, v{vaddr}, {srd_}, {soff} offen sc1
    s_sleep {stag}
    s_mov_b32 s53, 0
    """)
    a.label(lab)
    for i in range(2):
        a(f"""
        buffer_load_dword v{V_P+1-i}, v{vaddr}, {srd_}, {soff} offen sc1
        s_waitcnt vmcnt(1)
        v_cmp_ne_u32 vcc, {expect}, v{V_P+i}
        s_cbranch_vccz {lab}_done
        """)
    a(f"""
    s_add_u32 s53, s53, 1
    s_cmp_lt_u32 s53, {limit}
    s_cbranch_scc1 {lab}
    """)
    a.label(lab + "_done")
    a("s_mov_b64 exec, -1")


def wdma(a, S, n, tag):
    for p in range(n):
        a(f"s_add_u32 m0, s42, {1024*p}")
        a(f"s_add_u32 s41, s40, {8192*p}")
        a.vm(f"buffer_load_dwordx4 v{V_D}, {S}, s41 offen lds", tag)


def bload(a, s, base, tag):
    if s % 4 == 0: a(f"s_add_u32 s45, s{base}, {1024*s}")
    a.vm(f"buffer_load_dwordx4 {vr(FR+4*s,4)}, v{V_B}, s[12:15], s45 offen offset:{1024*(s%4)}", tag)


def mround(a, n, acc, first, tag, after=None):
    def rd(s):
        f = WF[s % 3]
        a.ds(f"ds_read_b64_tr_b16 {vr(f,2)}, v{V_W} offset:{2048*s}", ("w", s))
        a.ds(f"ds_read_b64_tr_b16 {vr(f+2,2)}, v{V_W} offset:{2048*s+512}", ("w", s))
    rd(0); rd(1)
    for s in range(n):
        if s + 2 < n: rd(s + 2)
        a.wait(lds=[("w", s)], vm=[(tag, s)])
        c = "0" if (first and s == 0) else vr(acc, 16)
        a(f"v_mfma_f32_32x32x16_bf16 {vr(acc,16)}, {vr(WF[s%3],4)}, {vr(FR+4*s,4)}, {c}")
        if after: after(s)


def out_srds(a):
    a("""
    s_load_dwordx2 s[56:57], s[0:1], 16
    s_load_dwordx2 s[58:59], s[0:1], 56
    s_load_dwordx2 s[60:61], s[0:1], 72
    s_waitcnt lgkmcnt(0)
    """)
    srd(a, 68, 56, 57, 512 * 1024)
    srd(a, 64, 58, 59, 896 * 1024)
    srd(a, 4, 60, 61, 2048 * 1024)


def out_phase():
    a = Asm()
    a.label("k2_out0")
    a(f"""
    s_waitcnt vmcnt(0)
    s_sub_u32 s44, s32, 4
    s_mul_i32 s42, s44, {14*1024}
    s_lshl_b32 s40, s42, 3
    s_lshl_b32 s46, s35, 7
    s_add_u32 s40, s40, s46
    v_lshrrev_b32 v{V_W}, 3, v1
    v_and_b32 v{V_G}, 7, v1
    v_bfe_u32 v{V_G1}, v1, 4, 1
    v_lshlrev_b32 v{V_G1}, 2, v{V_G1}
    v_xor_b32 v{V_G}, v{V_G}, v{V_G1}
    v_lshlrev_b32 v{V_G}, 4, v{V_G}
    v_lshl_add_u32 v{V_D}, v{V_W}, 10, v{V_G}
    """)
    wdma(a, "s[64:67]", 14, "r0")
    a.vm_q = []
    a.label("k2_out1")
    a(f"""
    s_setprio {OPRIO}
    s_barrier
    s_lshl_b32 s47, s38, 9
    s_add_u32 s47, s47, {FL2}
    v_lshlrev_b32 v{V_O}, 2, v1
    s_cmp_eq_u32 s32, 7
    s_cbranch_scc0 k2_out2
    s_lshl_b32 s44, s35, 2
    s_add_u32 s44, s44, s47
    s_add_u32 s48, s47, 256
    v_mov_b32 v{V_G}, 1
    v_mov_b32 v{V_G1}, 0
    s_mov_b64 exec, 1
    buffer_store_dword v{V_G}, v{V_G1}, s[12:15], s44 offen offset:256 sc1
    """)
    poll(a, "k2_pu", V_O, "s48", "0xff")
    a.label("k2_out2")
    a(f"""
    v_lshrrev_b32 v{V_W}, 3, v1
    v_and_b32 v{V_G}, 7, v1
    v_bfe_u32 v{V_G1}, v1, 4, 1
    v_lshlrev_b32 v{V_B}, 2, v{V_G1}
    v_xor_b32 v{V_G}, v{V_G}, v{V_B}
    v_lshlrev_b32 v{V_G}, 4, v{V_G}
    v_lshl_add_u32 v{V_D}, v{V_W}, 10, v{V_G}
    v_bfe_u32 v{V_W}, v1, 2, 2
    v_lshl_add_u32 v{V_W}, v3, 3, v{V_W}
    v_and_b32 v{V_G}, 1, v1
    v_bfe_u32 v{V_B}, v1, 1, 1
    v_lshl_add_u32 v{V_G}, v{V_G}, 1, v{V_B}
    v_lshlrev_b32 v{V_G}, 3, v{V_G}
    v_lshl_add_u32 v{V_G}, v{V_G1}, 5, v{V_G}
    s_bfe_u32 s49, s32, 0x10001
    s_lshl_b32 s49, s49, 6
    v_add_u32 v{V_G}, s49, v{V_G}
    v_bfe_u32 v{V_B}, v1, 3, 1
    v_lshlrev_b32 v{V_B}, 6, v{V_B}
    v_xor_b32 v{V_G}, v{V_G}, v{V_B}
    v_lshl_add_u32 v{V_W}, v{V_W}, 7, v{V_G}
    s_lshr_b32 s50, s32, 2
    s_mul_i32 s44, s50, {14*2048}
    v_add_u32 v{V_W}, s44, v{V_W}
    v_lshlrev_b32 v{V_B}, 4, v1
    s_and_b32 s51, s32, 1
    s_lshl_b32 s44, s38, 1
    s_add_u32 s51, s51, s44
    s_mul_i32 s52, s51, {88*1024}
    s_add_u32 s52, s52, {OU}
    s_mul_i32 s44, s50, {14*1024}
    s_add_u32 s54, s52, s44
    s_add_u32 s54, s54, {32*1024}
    s_add_u32 s55, s54, {28*1024}
    s_lshl_b32 s44, s50, 14
    s_add_u32 s52, s52, s44
    s_lshl_b32 s44, s51, 7
    s_add_u32 s44, s44, {G}
    v_lshlrev_b32 v{V_G1}, 2, v2
    s_lshl_b32 s46, s35, 7
    s_waitcnt vmcnt(0)
    s_barrier
    """)
    stamp(a, 2)
    for s in range(14): bload(a, s, 54, ("u0", s))
    a.vm(f"buffer_load_dword v{V_G}, v{V_G1}, s[12:15], s44 offen", "g")
    a(f"""
    s_mul_i32 s42, s32, {7*1024}
    s_lshl_b32 s40, s42, 3
    s_add_u32 s40, s40, s46
    s_add_u32 s40, s40, {448*1024}
    """)
    mround(a, 14, ACU, True, "u0", lambda s: bload(a, s, 55, ("u1", s)))
    a("s_barrier")
    wdma(a, "s[64:67]", 7, "r1")
    a.wait(vm=["r1"])
    a("s_barrier")
    a(f"""
    s_lshl_b32 s42, s32, 13
    s_lshl_b32 s40, s42, 3
    s_add_u32 s40, s40, s46
    """)
    mround(a, 14, ACU, False, "u1")
    a("s_barrier")
    stamp(a, 3)
    wdma(a, "s[68:71]", 8, "r2")
    a(f"""
    s_lshl_b32 s44, s50, 12
    v_add_u32 v{V_W}, s44, v{V_W}
    v_sub_f32 v{V_G1}, 1.0, v{V_G}
    s_lshl_b32 s48, s51, 15
    s_add_u32 s48, s48, s46
    s_add_u32 s48, s48, s49
    s_lshl_b32 s44, s50, 5
    s_add_u32 s48, s48, s44
    """)
    for r in range(16): a(f"v_mul_f32 v{ACU+r}, v{ACU+r}, v{V_G1}")
    a("s_cmp_eq_u32 s32, 7")
    a("s_cbranch_scc0 k2_out3")
    poll(a, "k2_po", V_O, "s47", "-1")
    a.label("k2_out3")
    a("s_waitcnt vmcnt(0)")
    a.vm_q = []
    a("s_barrier")
    stamp(a, 4)
    for s in range(16): bload(a, s, 52, ("o", s))
    a(f"""
    v_lshlrev_b32 v{V_O}, 10, v2
    v_lshl_add_u32 v{V_O}, v3, 4, v{V_O}
    s_lshl_b32 s44, s32, 11
    s_add_u32 s44, s44, {XCH}
    v_add_u32 v{V_P}, s44, v{V_B}
    v_xor_b32 v{V_P+1}, 0x2000, v{V_P}
    """)
    mround(a, 16, ACO, True, "o")
    stamp(a, 5)
    a("s_cmp_eq_u32 s50, 0")
    a("s_nop 7"); a("s_nop 2")
    a("s_cbranch_scc0 k2_out4")
    paths = []
    for kh in range(2):
        q = fork(a)
        if kh: q.label("k2_out4")
        snd, keep = (8, 0) if kh == 0 else (0, 8)
        for r in range(8): q(f"v_fmac_f32 v{ACU+snd+r}, v{ACO+snd+r}, v{V_G}")
        q(f"ds_write_b128 v{V_P}, {vr(ACU+snd,4)}")
        q(f"ds_write_b128 v{V_P}, {vr(ACU+snd+4,4)} offset:1024")
        for r in range(8): q(f"v_fmac_f32 v{ACU+keep+r}, v{ACO+keep+r}, v{V_G}")
        q(f"""
        s_waitcnt lgkmcnt(0)
        s_barrier
        ds_read_b128 {vr(FR,4)}, v{V_P+1}
        ds_read_b128 {vr(FR+4,4)}, v{V_P+1} offset:1024
        s_waitcnt lgkmcnt(0)
        """)
        for r in range(8): q(f"v_add_f32 v{ACU+keep+r}, v{ACU+keep+r}, v{FR+r}")
        for r in range(4): q(f"v_cvt_pk_bf16_f32 v{FR+8+r}, v{ACU+keep+2*r}, v{ACU+keep+2*r+1}")
        q(f"buffer_store_dwordx4 {vr(FR+8,4)}, v{V_O}, s[4:7], s48 offen")
        q("s_endpgm")
        paths.append(q)
    errs = []
    for q in paths: errs += check_hazards(a.lines + q.lines, "k2/out")
    return a.text() + paths[0].text() + paths[1].text(), errs
```

```python
import sys, os
os.environ["STAMP"] = "1"
sys.path.insert(0, os.path.dirname(os.path.abspath(__file__)))
from common import *
import gen
nact = int(sys.argv[2]); mode = sys.argv[3]; nw = int(sys.argv[4]); depth = int(sys.argv[5])
def mb():
    a = Asm()
    a(f"""
    s_cmp_ge_u32 s2, {nact*8}
    s_cbranch_scc1 k1_exit
    s_load_dwordx2 s[16:17], s[0:1], 40
    v_and_b32 v1, 63, v0
    v_lshrrev_b32 v17, 6, v0
    v_lshlrev_b32 v2, 4, v1
    v_readfirstlane_b32 s32, v17
    s_lshr_b32 s34, s2, 3
    s_cmp_ge_u32 s32, {nw}
    s_cbranch_scc1 k1_exit
    s_and_b32 s35, s34, 7
    s_lshl_b32 s35, s35, 18
    s_lshl_b32 s41, s32, 12
    s_lshr_b32 s36, s34, 3
    s_lshl_b32 s36, s36, 16
    s_add_u32 s43, s41, s36
    s_lshl_b32 s42, s32, 14
    s_mov_b32 m0, s42
    s_waitcnt lgkmcnt(0)
    """)
    srd(a, 8, 16, 17, 2048 * 4096)
    iters = 256 // (4 * nw)
    for ps in range(4):
        if ps == 1: a("s_waitcnt vmcnt(0)"); a("s_barrier") if nw == 8 else None; stamp(a, 0)
        a("s_mov_b32 s53, 0")
        a.label(f"k1_l{ps}")
        a("s_add_u32 s40, s35, s43")
        for p in range(4):
            if mode == "lds": a(f"buffer_load_dwordx4 v2, s[8:11], s40 offen offset:{1024*p} lds")
            else: a(f"buffer_load_dwordx4 {vr(8+4*p,4)}, v2, s[8:11], s40 offen offset:{1024*p}")
        a(f"s_add_u32 s43, s43, {nw*4096}")
        a(f"s_and_b32 s43, s43, 0x3ffff")
        a(f"s_waitcnt vmcnt({depth})")
        a("s_add_u32 s53, s53, 1")
        a(f"s_cmp_lt_u32 s53, {iters}")
        a(f"s_cbranch_scc1 k1_l{ps}")
    a("s_waitcnt vmcnt(0)")
    stamp(a, 1)
    a.label("k1_exit")
    a("s_endpgm")
    return header("k1_kernel") + a.text(), desc("k1_kernel", 64, 64), []
gen.build([(mb, "k1_kernel", 256, 512, 163840)], sys.argv[1])
```
